```python
import torch

def _softmax(x, axis=-1):
    return torch.softmax(x, dim=axis)
def _gelu(x):
    return torch.nn.functional.gelu(x, approximate="tanh")
def _silu(x):
    return torch.nn.functional.silu(x)
def _sigmoid(x):
    return torch.sigmoid(x)
def _layernorm(x, axis=-1, eps=1e-5):
    m = x.mean(dim=axis, keepdim=True)
    v = x.var(dim=axis, keepdim=True, unbiased=False)
    return (x - m) / torch.sqrt(v + eps)
def _scatter_add(tgt, idx, src, axis=0):
    return tgt.clone().index_add_(axis, idx, src)
def _segment_sum(src, seg, n):
    out = torch.zeros((n,) + src.shape[1:], dtype=src.dtype)
    return out.index_add_(0, seg, src)
def _pad(x, pw):
    flat = tuple(v for pair in reversed(pw) for v in pair)
    return torch.nn.functional.pad(x, flat)

kernel_name = 'parallel_sum__ssm_conv_s5__dense_activation_relu__prompt'

def setup_inputs():

    _w = (lambda a: (lambda t: t.to(torch.bfloat16) if t.is_floating_point() else t)(torch.as_tensor(a)))
    def _A_setup():
        B, S, D = 1, 2048, 512
        P = D
        Lambda_re = -0.5 * (lambda _x: torch.exp(torch.as_tensor(_x)))((lambda *s: torch.randn(*s, dtype=torch.bfloat16) * 0.8)(P))
        Lambda_im = (lambda *s: torch.randn(*s, dtype=torch.bfloat16) * 0.8)(P) * 1.0
        B_re = (lambda *s: torch.randn(*s, dtype=torch.bfloat16) * 0.8)(P, D) * (D ** -0.5)
        B_im = (lambda *s: torch.randn(*s, dtype=torch.bfloat16) * 0.8)(P, D) * (D ** -0.5)
        C_re = (lambda *s: torch.randn(*s, dtype=torch.bfloat16) * 0.8)(D, P) * (P ** -0.5)
        C_im = (lambda *s: torch.randn(*s, dtype=torch.bfloat16) * 0.8)(D, P) * (P ** -0.5)
        log_dt = (lambda *s: torch.randn(*s, dtype=torch.bfloat16) * 0.8)(P) * 0.3 - 2.0
        Dskip = (lambda *s: torch.randn(*s, dtype=torch.bfloat16) * 0.8)(D)
        return {
            "x": _w((lambda *s: torch.randn(*s, dtype=torch.bfloat16) * 0.05)(B, S, D)),
            "Lambda_re": _w(Lambda_re),
            "Lambda_im": _w(Lambda_im),
            "B_re": _w(B_re),
            "B_im": _w(B_im),
            "C_re": _w(C_re),
            "C_im": _w(C_im),
            "log_dt": _w(log_dt),
            "Dskip": _w(Dskip),
        }
    _A_in = _A_setup()

    def _B_setup():
        B, S, D, Dff = 1, 2048, 512, 1792
        return {
            "x": _w((lambda *s: torch.randn(*s, dtype=torch.bfloat16) * 0.05)(B, S, D)),
            "w1": _w((lambda *s: torch.randn(*s, dtype=torch.bfloat16) * 0.05)(D, Dff)),
            "w2": _w((lambda *s: torch.randn(*s, dtype=torch.bfloat16) * 0.05)(Dff, D)),
        }
    _B_in = _B_setup()

    return {
        "A_x": _A_in["x"],
        "A_Lambda_re": _A_in["Lambda_re"],
        "A_Lambda_im": _A_in["Lambda_im"],
        "A_B_re": _A_in["B_re"],
        "A_B_im": _A_in["B_im"],
        "A_C_re": _A_in["C_re"],
        "A_C_im": _A_in["C_im"],
        "A_log_dt": _A_in["log_dt"],
        "A_Dskip": _A_in["Dskip"],
        "B_x": _B_in["x"],
        "B_w1": _B_in["w1"],
        "B_w2": _B_in["w2"],
    }

def reference(A_x, A_Lambda_re, A_Lambda_im, A_B_re, A_B_im, A_C_re, A_C_im, A_log_dt, A_Dskip, B_x, B_w1, B_w2):
    def _A_ref(x, Lambda_re, Lambda_im, B_re, B_im, C_re, C_im, log_dt, Dskip):
        Bsz, L, H = x.shape
        Lam = Lambda_re + 1j * Lambda_im
        Bmat = B_re + 1j * B_im
        Cmat = C_re + 1j * C_im
        dt = torch.exp(log_dt)
        Lam_bar = torch.exp(dt * Lam)
        B_bar = ((Lam_bar - 1.0) / Lam)[:, None] * Bmat
        Bu = torch.einsum("bld,pd->blp", x + 0j, B_bar)
        h = torch.zeros_like(Bu[:, 0, :])
        hs = []
        for t in range(L):
            h = Lam_bar[None, :] * h + Bu[:, t, :]
            hs.append(h)
        hseq = torch.stack(hs, 1)
        y = 2.0 * torch.einsum("blp,dp->bld", hseq, Cmat).real + x * Dskip[None, None, :]
        return y

    def _B_ref(x, w1, w2):
        h = torch.einsum("bsd,df->bsf", x, w1)
        zero = torch.zeros_like(h)
        h = torch.maximum(h, zero)
        return torch.einsum("bsf,fd->bsd", h, w2)

    x = A_x
    xn = _layernorm(x, axis=-1)
    return x + _A_ref(xn, A_Lambda_re, A_Lambda_im, A_B_re, A_B_im, A_C_re, A_C_im, A_log_dt, A_Dskip) + _B_ref(xn, B_w1, B_w2)
```

```python
import re

TRANS = ('v_exp_f32', 'v_log_f32', 'v_rcp_f32', 'v_rsq_f32', 'v_sqrt_f32', 'v_sin_f32', 'v_cos_f32')
_REG = re.compile(r'^(-|abs\()?([vas])(\d+|\[(\d+):(\d+)\])\)?$')


def regs_of(op):
    op = op.strip()
    if op in ('vcc',):
        return {('s', 'vcc')}
    if op == 'exec':
        return {('s', 'exec')}
    if op == 'm0':
        return {('s', 'm0')}
    m = _REG.match(op)
    if not m:
        return set()
    k = m.group(2)
    if m.group(4) is not None:
        return {(k, i) for i in range(int(m.group(4)), int(m.group(5)) + 1)}
    return {(k, int(m.group(3)))}


def split_ops(rest):
    out, depth, cur = [], 0, ''
    for ch in rest:
        if ch in '[(':
            depth += 1
        if ch in '])':
            depth -= 1
        if ch == ',' and depth == 0:
            out.append(cur.strip())
            cur = ''
        else:
            cur += ch
    last = cur.strip()
    parts = last.split(None, 1)
    mods = ''
    if parts:
        out.append(parts[0])
        if len(parts) > 1:
            mods = parts[1]
    return out, mods


class Ins:
    __slots__ = ('text', 'tag', 'maybe', 'mn', 'ops', 'mods', 'cls', 'wr', 'rd', 'passes', 'srcc', 'srcab', 'sdata')

    def __init__(self, text, tag=None, maybe=False):
        self.text, self.tag, self.maybe = text, tag, maybe
        t = text.split(';')[0].strip()
        p = t.split(None, 1)
        self.mn = p[0]
        self.ops, self.mods = split_ops(p[1]) if len(p) > 1 else ([], '')
        mn, ops = self.mn, self.ops
        self.wr, self.rd = set(), set()
        self.passes, self.srcc, self.srcab, self.sdata = 0, set(), set(), set()
        R = [regs_of(o) for o in ops]
        allr = set().union(*R) if R else set()
        if mn.startswith('v_mfma'):
            self.cls = 'mfma'
            self.passes = 8 if '32x32x16' in mn else 4
            assert '32x32x16' in mn or '16x16x32' in mn, mn
            self.wr = R[0]
            self.srcab = R[1] | R[2]
            self.srcc = R[3]
            self.rd = self.srcab | self.srcc
        elif mn.startswith('v_'):
            self.cls = 'valu'
            if mn.startswith('v_permlane') and 'swap' in mn:
                self.wr = R[0] | R[1]
                self.rd = R[0] | R[1]
            elif mn.startswith('v_cmpx'):
                self.wr = R[0] | {('s', 'exec')}
                self.rd = set().union(*R[1:])
            elif mn.startswith(('v_fmac', 'v_dot2c')):
                self.wr = R[0]
                self.rd = allr
            elif mn.startswith(('v_add_co', 'v_sub_co', 'v_addc_co', 'v_subb_co')):
                self.wr = R[0] | R[1]
                self.rd = set().union(*R[2:])
            elif mn == 'v_nop':
                pass
            else:
                self.wr = R[0]
                self.rd = set().union(*R[1:]) if len(R) > 1 else set()
                if 'row_' in self.mods or 'quad_perm' in self.mods:
                    self.rd |= R[0]
        elif mn.startswith(('buffer_load', 'global_load')):
            self.cls = 'vmem'
            lds = ' lds' in (' ' + self.mods) or mn.startswith('global_load_lds')
            if lds:
                self.rd = allr | {('s', 'm0')}
            else:
                self.wr = R[0]
                self.rd = set().union(*R[1:])
                if 'd16' in mn:
                    self.rd |= R[0]
        elif mn.startswith(('buffer_store', 'global_store', 'buffer_atomic', 'global_atomic')):
            self.cls = 'vmem'
            self.rd = allr
            if mn.endswith(('x3', 'x4')):
                self.sdata = R[0] if mn.startswith('buffer') else R[1]
        elif mn.startswith(('buffer_wbl2', 'buffer_inv')):
            self.cls = 'vmem'
        elif mn.startswith('ds_read') or mn.startswith('ds_bpermute') or mn.startswith('ds_swizzle'):
            self.cls = 'ds'
            self.wr = R[0]
            self.rd = set().union(*R[1:])
        elif mn.startswith('ds_write'):
            self.cls = 'ds'
            self.rd = allr
        elif mn.startswith(('s_load', 's_memtime', 's_memrealtime', 's_buffer_load', 's_atomic')):
            self.cls = 'smem'
            self.wr = R[0]
            self.rd = set().union(*R[1:]) if len(R) > 1 else set()
        elif mn.startswith('s_'):
            self.cls = 'salu'
            if mn.startswith(('s_cmp', 's_cbranch', 's_branch', 's_waitcnt', 's_nop', 's_barrier', 's_endpgm',
                              's_sleep', 's_setprio', 's_bitcmp')):
                self.rd = allr
            else:
                self.wr = R[0]
                self.rd = set().union(*R[1:]) if len(R) > 1 else set()
                if 'saveexec' in mn:
                    self.wr |= {('s', 'exec')}
        else:
            raise ValueError('unknown instr ' + text)

    def states(self):
        if self.mn == 's_nop':
            return int(self.ops[0], 0) + 1
        return 1


def vec(s):
    return {r for r in s if r[0] in 'va'}


def sc(s):
    return {r for r in s if r[0] == 's'}


def need(p, c):
    n = 0
    if p.cls == 'valu':
        pv = vec(p.wr)
        ps = sc(p.wr)
        if c.cls == 'mfma' and pv & c.rd:
            n = max(n, 2)
        if c.cls == 'valu':
            if c.mn.startswith('v_permlane') and pv & c.rd:
                n = max(n, 2)
            if c.mn.startswith(('v_readfirstlane', 'v_readlane')) and pv & c.rd:
                n = max(n, 1)
            if ('row_' in c.mods or 'quad_perm' in c.mods) and pv & c.rd:
                n = max(n, 2)
            if p.mn.replace('_e32','').replace('_e64','') in TRANS and pv & c.rd:
                n = max(n, 1)
            rds = sc(c.rd)
            if c.mn.startswith('v_cndmask') and len(c.ops) == 3:
                rds = rds | {('s', 'vcc')}
            if (ps - {('s', 'exec')}) & rds:
                n = max(n, 4 if c.mn.startswith(('v_readlane', 'v_writelane')) else 2)
            if ('s', 'exec') in ps:
                if c.mn.startswith(('v_permlane', 'v_readlane', 'v_readfirstlane', 'v_writelane')):
                    n = max(n, 4)
                if 'row_' in c.mods or 'quad_perm' in c.mods:
                    n = max(n, 5)
                if ('s', 'exec') in rds:
                    n = max(n, 2)
        if p.mn.replace('_e32','').replace('_e64','') in TRANS and c.cls in ('vmem', 'ds') and pv & c.rd:
            n = max(n, 1)
        if c.cls == 'mfma' and ('s', 'exec') in ps:
            n = max(n, 4)
        if c.cls == 'vmem' and ps & sc(c.rd):
            n = max(n, 5)
        if c.cls in ('salu', 'smem') and ps & sc(c.rd):
            n = max(n, 1)
    elif p.cls == 'mfma':
        big = 12 if p.passes == 8 else 8
        if c.cls == 'mfma':
            if p.wr & c.srcab:
                n = max(n, big)
            if p.wr & c.srcc:
                if not (p.wr == c.srcc and p.passes == c.passes):
                    n = max(n, p.passes + 2)
            elif p.wr & c.wr:
                n = max(n, big)
        elif c.cls in ('valu', 'vmem', 'ds'):
            if p.wr & (c.rd | c.wr):
                n = max(n, big)
            if c.cls == 'valu' and p.srcc & c.wr:
                n = max(n, p.passes - 1)
    elif p.cls == 'salu':
        if ('s', 'm0') in p.wr and c.cls == 'vmem' and ('s', 'm0') in c.rd:
            n = max(n, 1)
    elif p.cls == 'vmem':
        if p.sdata and p.sdata & c.wr:
            n = max(n, 2 if c.cls in ('valu', 'mfma') else 1)
    return n


class Prog:
    def __init__(self):
        self.items = []

    def i(self, text, tag=None, maybe=False):
        for t in text.split('\n'):
            t = t.strip()
            if t:
                self.items.append(Ins(t, tag, maybe))

    def raw(self, text):
        self.items.append(('raw', text))

    def label(self, name):
        self.items.append(('label', name))

    def wvm(self, *tags):
        self.items.append(('wvm', tags))

    def wlg(self, *tags):
        self.items.append(('wlg', tags))

    def extend(self, other):
        self.items.extend(other.items)

    def finalize(self, verbose=False):
        out = []
        vm, lg = [], []
        seen_tags = set()
        for it in self.items:
            if isinstance(it, Ins):
                if it.tag is not None:
                    seen_tags.add(it.tag)
                if it.cls == 'vmem':
                    vm.append(it)
                elif it.cls in ('ds', 'smem'):
                    lg.append(it)
                elif it.mn == 's_waitcnt':
                    m = re.search(r'vmcnt\((\d+)\)', it.text)
                    if m and int(m.group(1)) == 0:
                        vm = []
                    m = re.search(r'lgkmcnt\((\d+)\)', it.text)
                    if m and int(m.group(1)) == 0:
                        lg = []
                out.append(it)
            elif it[0] in ('wvm', 'wlg'):
                q = vm if it[0] == 'wvm' else lg
                for t in it[1]:
                    assert t in seen_tags, f'wait on unknown tag {t}'
                idx = max((k for k, o in enumerate(q) if o.tag in it[1]), default=-1)
                if idx < 0:
                    continue
                n = sum(1 for o in q[idx + 1:] if not o.maybe)
                if it[0] == 'wvm':
                    n = min(n, 63)
                    new = Ins(f's_waitcnt vmcnt({n})')
                    vm = vm[idx + 1:]
                else:
                    if any(o.cls == 'smem' for o in q):
                        n = 0
                    n = min(n, 15)
                    new = Ins(f's_waitcnt lgkmcnt({n})')
                    lg = lg[idx + 1:] if n else []
                prev = out[-1] if out else None
                if isinstance(prev, Ins) and prev.mn == 's_waitcnt' and \
                        (('vmcnt' in prev.text) != ('vmcnt' in new.text)) and \
                        (('lgkmcnt' in prev.text) != ('lgkmcnt' in new.text)):
                    out[-1] = Ins(prev.text + ' ' + new.text.split(None, 1)[1])
                else:
                    out.append(new)
            else:
                out.append(it)
        res = []
        hist = []
        pos = 0
        nn = 0
        for it in out:
            if isinstance(it, Ins):
                req = 0
                for p, ppos in hist:
                    gap = pos - ppos - 1
                    k = need(p, it)
                    if k > gap:
                        req = max(req, k - gap)
                while req > 0:
                    k = min(req, 16)
                    res.append(f'  s_nop {k - 1}')
                    pos += k
                    req -= k
                    nn += 1
                res.append('  ' + it.text)
                hist.append((it, pos + it.states() - 1))
                pos += it.states()
                hist = [(p, pp) for p, pp in hist if pos - pp < 24]
            elif it[0] == 'label':
                res.append(it[1] + ':')
            else:
                res.append(it[1])
        if verbose:
            print('nops inserted', nn)
        return '\n'.join(res) + '\n'


def items_of(fn):
    p = Prog()
    fn(p)
    return p.items


def weave(main, bg, start=0, end=None):
    if end is None:
        end = len(main)
    n = end - start
    out = list(main[:start])
    k = 0
    for idx in range(n):
        out.append(main[start + idx])
        want = ((idx + 1) * len(bg)) // n
        while k < want:
            out.extend(bg[k])
            k += 1
    while k < len(bg):
        out.extend(bg[k])
        k += 1
    out.extend(main[end:])
    return out
```

```python
import sys
from asmlib import Prog, Ins, items_of

OPT = dict(al=0, aln=4, early=0, c2a=0, ex=0, cwr=4, crd=2, rdsplit=3, sp=1, vt=0, stl=1, st0=0, nb0=0, ffl0=-13, ffl1=5, p1issue=11, p1check=13, skd=5, bgk=18, flush=0, spread=1, split2=3, hfirst=5, jm=2, rp=1, nt=0, of='nt', slp=0, hl2=2, sw=0, hpf=0, tailA=0, tailB=4, aw=0, selpair=1, xbf=2, x1=0, w2p2=8, w2l1=1, nb1=8, cw=0, rot3=1, xld=43, w2latf=12, spoll=1, wring=4, w2defer=1, hrate=2, pf3=0, shadow=1, vpat=52, htr=9, rbar=24, vmbud=3.0, lbat=10, lbchk=15, ls0=2, lsd=2, minb=14, npre=3, c2early=0, psissue=29, pscheck=32, now2=0, nossm=0, out='k.s', stamps=0, lstamp=0, dbg=0, spin=0, rot=16, rot2=1,
           per1=26, per2=14, w2lat=9, w2bud=1.4, w2it=5, lbgap=5, lblat=4, sflat=5,
           order=0, nhb=11, fflag=7, pfissue=4, pfcheck=6, redbar=32, xflag=39, xpoll=42, xrecv=44, skipat=12)
for kv in sys.argv[1:]:
    k, v_ = kv.split('=')
    OPT[k] = type(OPT[k])(v_)

KN = 'parallel_sum__ssm_conv_s5__dense_activation_relu__prompt_kernel'

WS_XCH = 20 << 20
WS_AGG = 16 << 20
WS_FLAG = 17 << 20
WS_XFL = (17 << 20) + 65536
WS_STAT = 18 << 20
WS_EPOCH = 0xb80000
WS_USED = 64 << 20
SHADOW = 32 << 20
WS_STAMP = 200 << 20
WS_SIZE = 0x10000000
PHI = 0x9E3779B9

BBASE = 65536
WBASE = 81920 if OPT['wring'] == 4 else 98304


def wslot(c):
    return (c + 1) % 4 if OPT['wring'] == 4 else c % 3


MISC = 147456
STATM = MISC
STATR = MISC + 512
CSX = MISC + 2048
EX = MISC + 4096
TR = BBASE
LDS_SIZE = 163840
REDA, REDB = 98304, 49152

sW = 's3'
SX, SB, SW1, SH, SCRE, SCIM, SW2, SOUT = 8, 12, 16, 20, 24, 28, 32, 36
SPF, SXE = SOUT, SW1
P_X, P_LRE, P_LIM, P_BRE, P_BIM, P_CRE, P_CIM, P_LDT = 40, 42, 44, 46, 48, 50, 52, 54
P_D, P_W1, P_W2, P_OUT = 56, 60, 62, 64
sM0X, sM0B = 's4', 's5'
sVT = 6
sOX = 's66'
sTAG, sTAG2 = 's58', 's59'
sMASK, sPERM, sM0W, sW2O, sHL = 's42', 's43', 's44', 's46', 's47'
sA, sB_, sC_, sD_ = 's48', 's49', 's54', 's55'
sRH, sCH = 's45', 's67'
sFL = 50
TB = 68
FIELDS = ['offW1', 'sizeW1', 'OW', 'statF', 'offW2', 'offC', 'aggB', 'aggV', 'hsSt', 'hfSt', 'FF', 'FS', 'ff0', 'ff1',
          'poll', 'HA', 'HS', 'HB', 'offXE', 'offOUT', 'offD', 'XO', 'bump', 'skipL', 'statS',
          'U0', 'U1', 'U2', 'U3', 'U4', 'U5', 'U6']
assert len(FIELDS) == 32


def T(name):
    return f's{TB + FIELDS.index(name)}'


sOW, sXO, sFF, sFS = [T(x) for x in ('OW', 'XO', 'FF', 'FS')]


def srd(n):
    return f's[{n}:{n + 3}]'


def sp(n):
    return f's[{n}:{n + 1}]'


def v(n, cnt=1):
    return f'v{n}' if cnt == 1 else f'v[{n}:{n + cnt - 1}]'


def a(n, cnt=1):
    return f'a{n}' if cnt == 1 else f'a[{n}:{n + cnt - 1}]'


VTAG = 5
VX = [8, 9, 10, 11]
AX = [48, 21, 22, 23]
AB = [49, 25, 26, 27]
SEL0, VSTA = 50, 51
VW = [52, 13, 14, 15]
AW = [[53, 29], [30, 31]]
VW2 = [54, 17, 18, 19]
A2T = [55, 12]
A2C = [56, 16, 28, 4]
VEXR, VSIG, VEXZ = 57, 58, 59
VTRW, VTRR, VXS, VLG = 60, 61, 62, 63
VCSW, VH20, VSTW, VRSA = 240, 241, 242, 243
VH2 = [241, 77]
VO, VD = 242, 243
AUG = [20, 24]
SEL = 32
CS = [36, 40, 44]
PL, PL16, PPW, PL128Q, PL512, PK1 = 64, 66, 68, 70, 72, 74
VL0, VFF, VL16T = 76, 78, 79
VPUB, VCSR = 59, 50
BSB = 80
U = 80
WFR = [112, 120]
ACC_S = [128, 144]
ACC_F = [[160, 176], [192, 208]]
RS = 224
M0_, R0_, M1_, R1_ = 244, 245, 246, 247
EA, EB, CL, CSP = 248, 250, 252, 254
VG = 250
EXR, LB = 128, 128
PUB, LBO, LBT = 144, 148, 152
XR, PT = 160, 168
ACC2 = ACC_F
BOWN = 112
BFOR = [176, 192, 208]
HBUF = [80, 88, 96, 104, 224, 232, 144, 152, 128, 136, 64]
XS, MS, RS2 = 8, 24, 40
VRW, VRR = [56, 57, 58], 59


def pi_(i):
    return 16 * ((i >> 2) & 1) + (i & 3) + 4 * (i >> 3)


def vec_table():
    Q = [[] for _ in range(5)]
    for t in range(256):
        w, l = t >> 6, t & 63
        rh, ch = w >> 1, w & 1
        h, i = l >> 5, l & 31
        r, c, fb = (l >> 2) & 3, l & 3, (l >> 4) & 1
        pi = pi_(i)
        ax = (128 * pi + 16 * (((pi >> 1) & 7) ^ h)) ^ (rh * (8192 + 32))
        pat = 128 * i + 16 * (((i >> 1) & 7) ^ h)
        ab = pat ^ (BBASE + 4096 * ch + 32 * rh)
        sel = 0x3f803f80 if (((l >> 2) ^ (l >> 4)) & 1) == 0 else 0
        sta = STATM + 4 * (64 * rh + pi)
        vw = (l >> 4) * 3584 + 16 * ((l & 15) ^ (4 * (l >> 4)))
        aw = (256 * (8 * h + r) + 16 * ((2 * fb + (c >> 1)) ^ (4 * r)) + 8 * (c & 1)) ^ (WBASE + 4096 * rh + 128 * ch)
        vw2 = (l >> 3) * 1024 + 16 * ((l & 7) ^ (4 * fb))
        a2t = 4096 * w + 128 * (4 * h + r) + 16 * (4 * ((r >> 1) ^ ch) + 2 * fb + (c >> 1)) + 8 * (c & 1)
        a2c = 4096 * w + pat
        sig = 4 * rh + 2 * fb + h
        exr = EX + 2048 * ch + 128 * sig + 8 * (l & 15)
        exz = EX + 2048 * ch + 384 * rh + 8 * l
        trw = TR + 4096 * w + 128 * (l & 15) + 16 * ((2 * (sig & 3)) ^ (l & 7))
        trr = TR + 4096 * w + 128 * (8 * h + r) + 16 * ((2 * (c & 1) + fb) ^ r) + 8 * (c >> 1)
        xs = (h * 8192 + i) * 2
        lg = (16 * l - 384 + SHADOW) if (OPT['shadow'] and (l >> 3) == 3) else 16 * l
        csw = CSX + 512 * w + 4 * l
        Q[0].append([ax, ab, sel, sta])
        Q[1].append([vw, aw, vw2, a2t])
        Q[2].append([a2c, exr, sig, exz])
        Q[3].append([trw, trr, xs, lg])
        Q[4].append([csw, lg + 1024 * rh, STATM + 128 * w + 4 * i, STATR + 64 * sig])
    return [x for q in Q for e in q for x in e]


def ids(b):
    xcd, loc = b & 7, b >> 3
    return xcd, loc, 4 * (xcd >> 1) + (loc & 3), 8 * (xcd & 1) + (loc >> 2)


def sca_table():
    out = []
    for b in range(256):
        xcd, loc, g, j = ids(b)
        ka, cg = j >> 3, j & 7
        R2 = 2 * g + ka
        gl, jl = loc & 3, loc >> 2
        rot = {16: xcd, 0: 0, 1: jl + 2 * gl, 17: xcd + 4 * (gl ^ jl), 18: xcd + 2 * (gl + jl)}[OPT['rot']] & 7
        for w in range(4):
            rh, ch = w >> 1, w & 1
            f = {}
            jf = j
            if OPT['jm'] == 1:
                jf = 15 if cg == 7 else 7 * ka + cg
            if OPT['jm'] == 2:
                jf = 15 if cg == 3 else 7 * ka + cg - (cg > 3)
            f['offW1'] = 16 * w * 3584 + 256 * jf if jf < 14 else 0
            f['sizeW1'] = 512 * 3584 - f['offW1'] if jf < 14 else 0
            f['OW'] = rot * 64 * 3584
            f['statF'] = WS_STAT + (4 * g + w) * 256
            f['statS'] = WS_STAT + g * 1024 + j * 64 + w * 16
            f['offW2'] = 128 * cg
            f['offC'] = 65536 * cg + 512 * ka + 128 * w
            f['aggB'] = WS_AGG + j * 8192
            f['aggV'] = g * 512 + ch * 256
            hb = (2 * g + rh) * 176 * 2048
            f['hsSt'] = hb + (112 + 4 * j + 2 * ch) * 2048
            f['hfSt'] = hb + (8 * jf + 4 * ch) * 2048 if jf < 14 else WS_SIZE
            ff = WS_FLAG + g * 1024 + rh * 16
            f['FF'] = ff if jf < 14 else WS_SIZE
            pr = 2 * j + ch
            f['FS'] = ff + 32 + (pr >> 2) * 128 + (pr & 3) * 4
            pr = 2 * jf + ch
            for i in range(2):
                grp_ = (2 * pr + i) // 7
                f[f'ff{i}'] = grp_ * 128 + 4 * (pr - ((7 * grp_) >> 1))
            f['poll'] = WS_FLAG + R2 * 512 + w * 128
            f['HA'] = (R2 ^ 1) * 176 * 2048
            f['HB'] = R2 * 176 * 2048
            f['HS'] = 112 * 2048 + (4 * ka + w) * 16384 + (((cg >> 1) << 12) if OPT['rot3'] else 0) + (((g ^ cg) & 1) << 11 if OPT['rp'] else 0)
            e0 = (64 * R2 + 32 * rh) * 512 + 64 * cg + 32 * ch
            f['offXE'] = 2 * e0
            f['offOUT'] = 4 * e0
            f['offD'] = 2 * (64 * cg + 32 * ch)
            idx = (16 * g + j) * 4 + w
            f['XO'] = WS_XCH + idx * 8192
            f['bump'] = WS_EPOCH if (g, j, w) == (15, 0, 0) else WS_SIZE
            f['skipL'] = STATM + (2 * ka + rh) * 128
            rf = (((2 * g + cg) & 7) * 7) >> 3 if OPT['rot2'] else 0
            for i in range(7):
                e = 7 * (4 * ka + w) + (i + rf) % 7
                f[f'U{i}'] = (4 * (e >> 1) + (e & 1)) * 2048
            out += [f[k] for k in FIELDS]
    return out


stampn = [0]


def stamp(p, loop=False):
    if OPT['lstamp'] >= 2:
        ok = (loop == OPT['lstamp'] + 1)
    else:
        ok = (bool(loop) == bool(OPT['lstamp']) or loop == 2) and loop < 3
    if OPT['stamps'] and ok and stampn[0] < 16:
        n = stampn[0]
        stampn[0] += 1
        p.i('s_memrealtime s[100:101]' if OPT['stamps'] == 1 else 's_memtime s[100:101]')
        p.i('s_waitcnt lgkmcnt(0)')
        p.i(f'v_writelane_b32 v7, s100, {n}')


def stamp_flush(p):
    if OPT['stamps']:
        p.i('s_lshl_b32 s50, s2, 7')
        p.i(f's_add_u32 s50, s50, {WS_STAMP}')
        p.i(f's_cmp_eq_u32 {sW}, {OPT["sw"]}')
        p.i('s_cselect_b32 s51, 16, 0')
        p.i('v_lshlrev_b32 v1, 3, v0')
        p.i('v_mov_b32 v2, 0x80000000')
        p.i('v_cmp_gt_u32 vcc, s51, v0')
        p.i('v_cndmask_b32 v1, v2, v1, vcc')
        p.i('v_mov_b32 v2, v7')
        p.i('v_mov_b32 v3, 0')
        p.i(f'buffer_store_dwordx2 v[2:3], v1, {srd(SH)}, s50 offen')


def mk_srd(p, n, ptr, off_sgpr, size):
    if off_sgpr is None:
        p.i(f's_mov_b32 s{n}, s{ptr}')
        p.i(f's_mov_b32 s{n + 1}, s{ptr + 1}')
    else:
        p.i(f's_add_u32 s{n}, s{ptr}, {off_sgpr}')
        p.i(f's_addc_u32 s{n + 1}, s{ptr + 1}, 0')
    p.i(f's_mov_b32 s{n + 2}, {size}')
    p.i(f's_mov_b32 s{n + 3}, 0x20000')


def cmac(p, d, x, L, c):
    assert d != x
    if d == c:
        p.i(f'v_fmac_f32 {v(d)}, {v(x)}, {v(L)}')
        p.i(f'v_fmac_f32 {v(d + 1)}, {v(x + 1)}, {v(L)}')
    else:
        p.i(f'v_fma_f32 {v(d)}, {v(x)}, {v(L)}, {v(c)}')
        p.i(f'v_fma_f32 {v(d + 1)}, {v(x + 1)}, {v(L)}, {v(c + 1)}')
    p.i(f'v_fma_f32 {v(d)}, -{v(x + 1)}, {v(L + 1)}, {v(d)}')
    p.i(f'v_fmac_f32 {v(d + 1)}, {v(x)}, {v(L + 1)}')


def cmul(p, d, x, y):
    assert d != x and d != y
    p.i(f'v_mul_f32 {v(d)}, {v(x)}, {v(y)}')
    p.i(f'v_mul_f32 {v(d + 1)}, {v(x)}, {v(y + 1)}')
    p.i(f'v_fma_f32 {v(d)}, -{v(x + 1)}, {v(y + 1)}, {v(d)}')
    p.i(f'v_fmac_f32 {v(d + 1)}, {v(x + 1)}, {v(y)}')


def csq(p, d, x):
    assert d != x
    p.i(f'v_mul_f32 {v(d)}, {v(x)}, {v(x)}')
    p.i(f'v_mul_f32 {v(d + 1)}, {v(x)}, {v(x + 1)}')
    p.i(f'v_fma_f32 {v(d)}, -{v(x + 1)}, {v(x + 1)}, {v(d)}')
    p.i(f'v_add_f32 {v(d + 1)}, {v(d + 1)}, {v(d + 1)}')


def bf16r(p, dst, src):
    p.i(f'v_cvt_pk_bf16_f32 {v(dst)}, {v(src)}, {v(src)}')
    p.i(f'v_and_b32 {v(dst)}, {sMASK}, {v(dst)}')


def bc(reg):
    return v(reg & ~1, 2), reg & 1


def safe(p):
    p.items.append(('safe',))


def glen(g):
    return sum(1 for x in g if isinstance(x, Ins))


SCC_W = ('s_add_u32', 's_cmp_eq_u32', 's_cmp_lt_u32', 's_cmp_ge_u32', 's_bitcmp1_b32')
SCC_R = ('s_addc_u32', 's_cselect_b32', 's_cselect_b64')


def singles(items):
    G, cur = [], []
    for it in items:
        if not isinstance(it, Ins) and it[0] == 'safe':
            assert not cur
            G.append('SAFE')
            continue
        cur.append(it)
        if isinstance(it, Ins):
            if it.mn in SCC_R and len(cur) == 1:
                G[-1].extend(cur)
            else:
                G.append(cur)
            cur = []
    assert not cur
    return G


def isv(g):
    return g and g[-1] is None and any(isinstance(x, Ins) and x.cls == 'vmem' for x in g)


def place(p, mfmas, weights, fillers):
    tot = sum(weights)
    total_len = sum(glen(g) + (2 if isv(g) else 0) for g in fillers)
    k = acc = done = 0
    for m, w in zip(mfmas, weights):
        p.items.extend(m if isinstance(m, list) else [m])
        acc += w
        want = acc * total_len / tot
        hadv = False
        while k < len(fillers) and done < want - 0.01:
            if isv(fillers[k]):
                if hadv:
                    break
                hadv = True
                done += 2
            p.items.extend(x for x in fillers[k] if x is not None)
            done += glen(fillers[k])
            k += 1
    while k < len(fillers):
        p.items.extend(x for x in fillers[k] if x is not None)
        k += 1


def place_v(p, mfmas, vgroups, fillers):
    n = len(mfmas)
    gaps = [[] for _ in range(n)]
    order = [0, 2, 1, 3] if n == 4 else list(range(n))
    slots = sorted(order[k % n] for k in range(len(vgroups)))
    for g, k in zip(vgroups, slots):
        gaps[k].append(g)
    tot = sum(glen(g) for g in fillers) + sum(2 * glen(g) for g in vgroups)
    k = 0
    done = 0
    for i, m in enumerate(mfmas):
        p.items.extend(m if isinstance(m, list) else [m])
        for g in gaps[i]:
            p.items.extend(g)
            done += 2 * glen(g)
        while k < len(fillers) and done < (i + 1) * tot / n - 0.01:
            p.items.extend(fillers[k])
            done += glen(fillers[k])
            k += 1
    while k < len(fillers):
        p.items.extend(fillers[k])
        k += 1


def split_v(items):
    G, cur = [], []
    for it in items:
        cur.append(it)
        if isinstance(it, Ins) and it.cls == 'vmem':
            G.append(cur)
            cur = []
    if cur:
        G[-1].extend(cur)
    return G


def mix(front, mem, bgs):
    F = list(front)
    bgs = list(bgs)
    step = max(1, len(bgs) // (len(mem) + 1))
    for d in mem:
        for _ in range(step):
            if bgs:
                F.append(bgs.pop(0))
        F.append(d)
    F.extend(bgs)
    return F


def grp(lines, tag):
    return [Ins(t, tag if t.startswith('buffer') else None) for t in lines]


def dma_xb(c):
    slot = c % 4
    tag = ('dx', c)
    return [
        grp([f's_add_u32 m0, {sM0X}, {slot * 16384}',
             f'buffer_load_dwordx4 {v(VX[0])}, {srd(SX)}, {sOX} offen lds',
             f'buffer_load_dwordx4 {v(VX[1])}, {srd(SX)}, {sOX} offen offset:1024 lds'], tag),
        grp([f'buffer_load_dwordx4 {v(VX[2])}, {srd(SX)}, {sOX} offen offset:2048 lds',
             f'buffer_load_dwordx4 {v(VX[3])}, {srd(SX)}, {sOX} offen offset:3072 lds',
             f's_add_u32 m0, {sM0B}, {slot * 8192}'], tag),
        grp([f'buffer_load_dwordx4 {v(VX[0])}, {srd(SB)}, {sOX} offen lds',
             f'buffer_load_dwordx4 {v(VX[1])}, {srd(SB)}, {sOX} offen offset:1024 lds',
             f's_add_u32 {sOX}, {sOX}, 128', f's_and_b32 {sOX}, {sOX}, 1023'], tag)]


def dma_w(c):
    slot = wslot(c)
    tag = ('dw', c)
    return [
        grp([f's_add_u32 m0, {sM0W}, {slot * 16384}',
             f'buffer_load_dwordx4 {v(VW[0])}, {srd(SW1)}, {sOW} offen lds',
             f'buffer_load_dwordx4 {v(VW[1])}, {srd(SW1)}, {sOW} offen offset:1024 lds'], tag),
        grp([f's_add_u32 m0, {sM0W}, {slot * 16384}',
             f'buffer_load_dwordx4 {v(VW[2])}, {srd(SW1)}, {sOW} offen offset:2048 lds',
             f'buffer_load_dwordx4 {v(VW[3])}, {srd(SW1)}, {sOW} offen offset:3072 lds',
             f's_add_u32 {sOW}, {sOW}, {64 * 3584}', f's_cmp_eq_u32 {sOW}, {512 * 3584}', f's_cselect_b32 {sOW}, 0, {sOW}'], tag)]


def vt_load(p, q, dst, tag):
    if q:
        p.i(f'v_add_u32 v1, {4096 * q}, {v(VL16T)}')
    p.i(f'global_load_dwordx4 {v(dst, 4)}, {"v1" if q else v(VL16T)}, {sp(sVT)}', tag)


def prologue(p):
    G, J, RH, CH = 's68', 's69', 's70', 's71'
    if OPT['st0']:
        p.i('s_memrealtime s[98:99]')
    p.i('s_cmp_ge_u32 s2, 256')
    p.i('s_cbranch_scc1 L_end')
    p.i('s_load_dwordx16 s[40:55], s[0:1], 0')
    p.i('s_load_dwordx2 s[20:21], s[0:1], 112')
    p.i('s_load_dwordx8 s[56:63], s[0:1], 64')
    p.i('s_load_dwordx2 s[64:65], s[0:1], 96')
    p.i('v_lshrrev_b32 v1, 6, v0')
    p.i(f'v_lshlrev_b32 {v(VL16T)}, 4, v0')
    p.i(f'v_readfirstlane_b32 {sW}, v1')
    p.i('v_and_b32 v0, 63, v0')
    p.i('s_getpc_b64 s[80:81]')
    p.i(f's_add_u32 s{sVT}, s80, tbl_v@rel32@lo+4')
    p.i(f's_addc_u32 s{sVT + 1}, s81, tbl_v@rel32@hi+12')
    p.i('s_lshl_b32 s76, s2, 9')
    if OPT['vt']:
        p.i(f's_add_u32 s76, s76, {5 * 4096}')
    p.i('v_lshl_add_u32 v2, v1, 7, s76')
    p.i(f'global_load_dword v219, v2, {sp(sVT)}')
    if OPT['vt']:
        vt_load(p, 0, 48, 'q0')
        for q, dst in ((1, 52), (2, 56), (3, 60), (4, 240)):
            vt_load(p, q, dst, 'q1')
    p.i(f's_lshl_b32 s67, {sW}, 7')
    p.i('s_add_u32 s67, s67, s76')
    p.i('s_lshr_b32 s73, s2, 3')
    p.i('s_and_b32 s80, s80, 0xffffff00')
    p.i('s_and_b32 s74, s73, 7')
    p.i('s_lshl_b32 s74, s74, 12')
    p.i(f's_min_u32 s74, s74, (L_end-{KN}-4096)&0xfffff0')
    p.i('s_add_u32 s80, s80, s74')
    p.i('s_addc_u32 s81, s81, 0')
    p.i(f'global_load_dwordx4 v[220:223], {v(VL16T)}, s[80:81]', tag='pf')
    p.i('s_and_b32 s72, s2, 7')
    p.i('s_lshr_b32 s74, s72, 1')
    p.i('s_lshl_b32 s74, s74, 2')
    p.i('s_and_b32 s75, s73, 3')
    p.i(f's_add_u32 {G}, s74, s75')
    p.i('s_and_b32 s74, s72, 1')
    p.i('s_lshl_b32 s74, s74, 3')
    p.i('s_lshr_b32 s75, s73, 2')
    p.i(f's_add_u32 {J}, s74, s75')
    if OPT['rot'] == 16:
        p.i(f's_lshl_b32 {sOX}, s72, 7')
    elif OPT['rot'] in (1, 17, 18):
        if OPT['rot'] == 1:
            p.i('s_lshl_b32 s74, s73, 1')
            p.i('s_add_u32 s74, s74, s75')
        elif OPT['rot'] == 17:
            p.i('s_xor_b32 s74, s73, s75')
            p.i('s_lshl_b32 s74, s74, 2')
            p.i('s_add_u32 s74, s74, s72')
        else:
            p.i('s_add_u32 s74, s73, s75')
            p.i('s_lshl_b32 s74, s74, 1')
            p.i('s_add_u32 s74, s74, s72')
        p.i('s_and_b32 s74, s74, 7')
        p.i(f's_lshl_b32 {sOX}, s74, 7')
    else:
        p.i(f's_mov_b32 {sOX}, 0')
    p.i(f's_lshr_b32 {RH}, {sW}, 1')
    p.i(f's_and_b32 {CH}, {sW}, 1')
    p.i('v_lshrrev_b32 v1, 3, v0')
    p.i('v_lshrrev_b32 v2, 4, v0')
    p.i('v_and_b32 v3, 7, v0')
    p.i('v_xor_b32 v3, v3, v2')
    p.i('v_lshlrev_b32 v3, 4, v3')
    p.i(f'v_lshl_add_u32 {v(VX[0])}, v1, 10, v3')
    p.i(f'v_xor_b32 {v(VX[1])}, 64, {v(VX[0])}')
    p.i(f'v_add_u32 {v(VX[1])}, 7168, {v(VX[1])}')
    p.i(f'v_add_u32 {v(VX[2])}, 14336, {v(VX[0])}')
    p.i(f'v_add_u32 {v(VX[3])}, 14336, {v(VX[1])}')
    p.i(f's_lshl_b32 {sM0X}, {sW}, 12')
    p.i(f's_lshl_b32 s74, {sW}, 11')
    p.i(f's_add_u32 {sM0B}, s74, {BBASE}')
    p.i(f's_lshl_b32 s75, {G}, 17')
    p.i(f's_lshl_b32 s76, {J}, 13')
    p.i('s_add_u32 s76, s76, s75')
    p.i('s_add_u32 s76, s76, s74')
    p.i('v_lshrrev_b32 v6, 5, v0')
    p.i('v_lshlrev_b32 v4, 5, v6')
    p.i('v_add_lshl_u32 v4, v4, v0, 4')
    p.i('v_add_u32 v4, s76, v4')
    p.i(f's_lshl_b32 s77, {J}, 6')
    p.i(f's_lshl_b32 s78, {CH}, 5')
    p.i('s_add_u32 s77, s77, s78')
    p.i('v_and_b32 v1, 15, v0')
    p.i('v_lshl_add_u32 v5, v1, 1, s77')
    p.i(f's_lshl_b32 s77, {sW}, 15')
    p.i('s_add_u32 s77, s77, s75')
    p.i(f's_lshl_b32 s75, {J}, 15')
    p.i(f's_lshl_b32 s76, {RH}, 14')
    p.i('s_add_u32 s75, s75, s76')
    p.i(f's_mov_b32 s{SX + 2}, 32768')
    p.i(f's_mov_b32 s{SX + 3}, 0x20000')
    p.i(f's_mov_b32 s{SB + 2}, 16384')
    p.i(f's_mov_b32 s{SB + 3}, 0x20000')
    p.i(f's_mov_b32 s{SH + 2}, {WS_SIZE}')
    p.i(f's_mov_b32 s{SH + 3}, 0x20000')
    p.i(f's_mov_b32 s16, {WS_EPOCH}')
    p.i(f's_cmp_eq_u32 {CH}, 0')
    if OPT['st0']:
        p.i('s_memrealtime s[96:97]')
    p.i('s_waitcnt lgkmcnt(0)')
    if OPT['st0']:
        p.i('v_writelane_b32 v7, s98, 0')
        p.i('v_writelane_b32 v7, s96, 1')
        stampn[0] = 2
    p.i(f's_cselect_b64 s[{SB}:{SB + 1}], {sp(P_BRE)}, {sp(P_BIM)}')
    stamp(p, 2)
    p.i(f'global_load_dwordx4 {v(XR, 4)}, v4, {sp(P_X)}', 'xr')
    p.i(f'global_load_dwordx4 {v(XR + 4, 4)}, v4, {sp(P_X)} offset:512', 'xr')
    p.i(f's_add_u32 s{SX}, s{P_X}, s77')
    p.i(f's_addc_u32 s{SX + 1}, s{P_X + 1}, 0')
    p.i(f's_add_u32 s{SB}, s{SB}, s75')
    p.i(f's_addc_u32 s{SB + 1}, s{SB + 1}, 0')
    p.i(f's_load_dword {sTAG}, s[20:21], s16')
    p.i(f's_load_dwordx16 s[{TB}:{TB + 15}], {sp(sVT)}, s67')
    p.i('s_add_u32 s67, s67, 64')
    p.i(f's_load_dwordx16 s[{TB + 16}:{TB + 31}], {sp(sVT)}, s67')
    for g in dma_xb(0):
        p.items.extend(g)
    p.i(f'global_load_ushort {v(PT)}, v5, {sp(P_LRE)}', 'par')
    p.i(f'global_load_ushort {v(PT + 1)}, v5, {sp(P_LIM)}', 'par')
    p.i(f'global_load_ushort {v(PT + 2)}, v5, {sp(P_LDT)}', 'par')
    for g in dma_xb(1):
        p.items.extend(g)
    p.i(f's_mov_b32 {sMASK}, 0xffff0000')
    p.i(f's_mov_b32 {sPERM}, 0x07060302')
    if not OPT['vt']:
        vec_q0(p)
        if OPT['sp']:
            bg_seeds(p)
    p.i('v_and_b32 v2, 31, v0')
    p.i('v_mov_b32 v1, 0x80000000')
    p.i('v_cmp_eq_u32 vcc, 0, v0')
    p.i(f's_add_u32 {sM0W}, {sM0X}, {WBASE}')
    p.i(f's_mov_b32 {sA}, 0x3f803f80')
    p.i(f'v_cndmask_b32 {v(VL0)}, v1, v0, vcc')
    p.i('v_cmp_eq_u32 vcc, 0, v2')
    p.i('v_lshlrev_b32 v2, 3, v6')
    if OPT['stl']:
        for pos in range(1, 4):
            p.i(f'v_xor_b32 {v(AX[pos])}, {32 * pos}, {v(AX[0])}')
            p.i(f'v_xor_b32 {v(AB[pos])}, {32 * pos}, {v(AB[0])}')
        p.i('v_cndmask_b32 v3, v1, v2, vcc')
        for g in dma_xb(2):
            p.items.extend(g)
        p.i('s_waitcnt lgkmcnt(0)')
        p.i(f's_add_u32 {sTAG}, {sTAG}, {PHI}')
        p.i(f'v_mov_b32 {v(VG + 1)}, {sTAG}')
        p.i(f's_mov_b32 {sTAG2}, {sTAG}')
        p.i(f'v_mov_b32 {v(VTAG)}, {sTAG}')
        return
    if OPT['st0']:
        stamp(p, 2)
    p.wvm('xr')
    if OPT['st0']:
        stamp(p, 2)
    p.i('v_cndmask_b32 v3, v1, v2, vcc')
    S, Q, S2, Q2 = 172, 173, 174, 175
    for d in range(8):
        r = XR + d
        ss, qq = (S, Q) if d % 2 == 0 else (S2, Q2)
        p.i(f'v_dot2_f32_bf16 {v(ss)}, {v(r)}, {sA}, {"0" if d < 2 else v(ss)}')
        p.i(f'v_dot2_f32_bf16 {v(qq)}, {v(r)}, {v(r)}, {"0" if d < 2 else v(qq)}')
    fill = [f'v_xor_b32 {v(AX[pos])}, {32 * pos}, {v(AX[0])}' for pos in range(1, 4)] + \
           [f'v_xor_b32 {v(AB[pos])}, {32 * pos}, {v(AB[0])}' for pos in range(1, 4)] + \
           [f'v_mov_b32 {v(SEL + i)}, {v(SEL0)}' for i in range(4)]
    for _ in range(3):
        p.i(fill.pop(0))
    p.i(f'v_pk_add_f32 {v(S, 2)}, {v(S, 2)}, {v(S2, 2)}')
    p.i(fill.pop(0))
    for sh in (8, 4, 2, 1):
        p.i(fill.pop(0))
        p.i(f'v_add_f32 {v(S)}, {v(S)}, {v(S)} row_ror:{sh} row_mask:0xf bank_mask:0xf')
        p.i(f'v_add_f32 {v(Q)}, {v(Q)}, {v(Q)} row_ror:{sh} row_mask:0xf bank_mask:0xf')
    p.i(f'v_mov_b32 {v(S2)}, {v(S)}')
    p.i(f'v_mov_b32 {v(Q2)}, {v(Q)}')
    p.i(fill.pop(0))
    p.i(f'v_permlane16_swap_b32 {v(S)}, {v(S2)}')
    p.i(f'v_permlane16_swap_b32 {v(Q)}, {v(Q2)}')
    p.i(f'v_pk_add_f32 {v(S, 2)}, {v(S, 2)}, {v(S2, 2)}')
    p.i(f'v_mul_f32 {v(S)}, 0x3b000000, {v(S)}')
    p.i(f'v_mul_f32 {v(Q)}, 0x3b000000, {v(Q)}')
    p.i(f'v_fma_f32 {v(Q)}, -{v(S)}, {v(S)}, {v(Q)}')
    p.i(f'v_max_f32 {v(Q)}, 0, {v(Q)}')
    bf16r(p, Q, Q)
    p.i(f'v_add_f32 {v(Q)}, 0x3727c5ac, {v(Q)}')
    bf16r(p, Q, Q)
    p.i(f'v_sqrt_f32 {v(Q)}, {v(Q)}')
    p.i(fill.pop(0))
    assert not fill
    p.i(f'v_cvt_pk_bf16_f32 {v(VG)}, {v(S)}, {v(Q)}')
    g2 = dma_xb(2)
    p.items.extend(g2[0])
    p.i('s_waitcnt lgkmcnt(0)')
    p.i(f's_add_u32 {sTAG}, {sTAG}, {PHI}')
    p.i(f'v_mov_b32 {v(VG + 1)}, {sTAG}')
    p.i(f's_mov_b32 {sTAG2}, {sTAG}')
    p.i(f'buffer_store_dwordx2 {v(VG, 2)}, v3, {srd(SH)}, {T("statS")} offen sc1', 'stp')
    p.items.extend(g2[1])
    p.items.extend(g2[2])
    p.i(f'v_mov_b32 {v(VTAG)}, {sTAG}')


def late_stats(p):
    S, Q, S2, Q2 = 172, 173, 174, 175
    for d in range(8):
        r = XR + d
        ss, qq = (S, Q) if d % 2 == 0 else (S2, Q2)
        p.i(f'v_dot2_f32_bf16 {v(ss)}, {v(r)}, {sA}, {"0" if d < 2 else v(ss)}')
        p.i(f'v_dot2_f32_bf16 {v(qq)}, {v(r)}, {v(r)}, {"0" if d < 2 else v(qq)}')
    for i in range(4):
        p.i(f'v_mov_b32 {v(SEL + i)}, {v(SEL0)}')
    p.i(f'v_pk_add_f32 {v(S, 2)}, {v(S, 2)}, {v(S2, 2)}')
    for sh in (8, 4, 2, 1):
        p.i(f'v_add_f32 {v(S)}, {v(S)}, {v(S)} row_ror:{sh} row_mask:0xf bank_mask:0xf')
        p.i(f'v_add_f32 {v(Q)}, {v(Q)}, {v(Q)} row_ror:{sh} row_mask:0xf bank_mask:0xf')
    p.i(f'v_mov_b32 {v(S2)}, {v(S)}')
    p.i(f'v_mov_b32 {v(Q2)}, {v(Q)}')
    p.i(f'v_permlane16_swap_b32 {v(S)}, {v(S2)}')
    p.i(f'v_permlane16_swap_b32 {v(Q)}, {v(Q2)}')
    p.i(f'v_pk_add_f32 {v(S, 2)}, {v(S, 2)}, {v(S2, 2)}')
    p.i(f'v_mul_f32 {v(S)}, 0x3b000000, {v(S)}')
    p.i(f'v_mul_f32 {v(Q)}, 0x3b000000, {v(Q)}')
    p.i(f'v_fma_f32 {v(Q)}, -{v(S)}, {v(S)}, {v(Q)}')
    p.i(f'v_max_f32 {v(Q)}, 0, {v(Q)}')
    bf16r(p, Q, Q)
    p.i(f'v_add_f32 {v(Q)}, 0x3727c5ac, {v(Q)}')
    bf16r(p, Q, Q)
    p.i(f'v_sqrt_f32 {v(Q)}, {v(Q)}')
    p.i(f'v_cvt_pk_bf16_f32 {v(VG)}, {v(S)}, {v(Q)}')
    p.i(f'buffer_store_dwordx2 {v(VG, 2)}, v3, {srd(SH)}, {T("statS")} offen sc1', 'stp')


def vec_q0(p):
    p.i(f's_lshr_b32 {sRH}, {sW}, 1')
    p.i(f's_and_b32 {sCH}, {sW}, 1')
    p.i('v_bfe_u32 v1, v0, 2, 1')
    p.i('v_and_b32 v2, 3, v0')
    p.i('v_lshl_add_u32 v1, v1, 4, v2')
    p.i('v_bfe_u32 v3, v0, 3, 2')
    p.i('v_lshl_add_u32 v2, v3, 2, v1')
    p.i('v_bfe_u32 v1, v2, 1, 3')
    p.i('v_xor_b32 v1, v1, v6')
    p.i('v_lshlrev_b32 v1, 4, v1')
    p.i('v_lshl_add_u32 v1, v2, 7, v1')
    p.i(f's_mul_i32 {sB_}, {sRH}, {8192 + 32}')
    p.i(f'v_xor_b32 {v(AX[0])}, {sB_}, v1')
    p.i(f's_lshl_b32 {sB_}, {sRH}, 8')
    p.i(f's_add_u32 {sB_}, {sB_}, {STATM}')
    p.i(f'v_lshl_add_u32 {v(VSTA)}, v2, 2, {sB_}')
    p.i('v_and_b32 v2, 31, v0')
    p.i('v_bfe_u32 v1, v0, 1, 3')
    p.i('v_xor_b32 v1, v1, v6')
    p.i('v_lshlrev_b32 v1, 4, v1')
    p.i('v_lshl_add_u32 v1, v2, 7, v1')
    p.i(f'v_add_u32 {v(A2C[0])}, {sM0X}, v1')
    p.i(f's_lshl_b32 {sB_}, {sCH}, 12')
    p.i(f's_lshl_b32 {sC_}, {sRH}, 5')
    p.i(f's_add_u32 {sB_}, {sB_}, {sC_}')
    p.i(f's_add_u32 {sB_}, {sB_}, {BBASE}')
    p.i(f'v_xor_b32 {v(AB[0])}, {sB_}, v1')
    p.i('v_lshrrev_b32 v1, 2, v0')
    p.i('v_xor_b32 v1, v1, v0')
    p.i('v_bfe_i32 v1, v1, 2, 1')
    p.i('v_not_b32 v1, v1')
    p.i(f'v_and_b32 {v(SEL0)}, 0x3f803f80, v1')


def bg_seeds(p):
    R, FB2, C1 = 200, 201, 202
    p.i(f'v_bfe_u32 {v(R)}, v0, 2, 2')
    p.i('v_bfe_u32 v1, v0, 4, 1')
    p.i('v_bfe_u32 v2, v0, 1, 1')
    p.i(f'v_lshl_add_u32 {v(FB2)}, v1, 1, v2')
    p.i(f'v_and_b32 {v(C1)}, 1, v0')
    p.i('v_lshl_add_u32 v3, v1, 1, v6')
    p.i(f's_lshl_b32 {sB_}, {sRH}, 2')
    p.i(f'v_add_u32 {v(VSIG)}, {sB_}, v3')
    p.i(f'v_lshl_add_u32 v1, {v(C1)}, 1, v1')
    p.i(f'v_xor_b32 v1, v1, {v(R)}')
    p.i('v_lshlrev_b32 v2, 3, v2')
    p.i('v_lshl_add_u32 v1, v1, 4, v2')
    p.i(f'v_lshl_add_u32 v2, v6, 3, {v(R)}')
    p.i('v_lshl_add_u32 v1, v2, 7, v1')
    p.i(f's_add_u32 {sB_}, {sM0X}, {TR}')
    p.i(f'v_add_u32 {v(VTRR)}, {sB_}, v1')
    p.i('v_lshlrev_b32 v3, 1, v3')
    p.i('v_and_b32 v1, 7, v0')
    p.i('v_xor_b32 v3, v3, v1')
    p.i('v_and_b32 v1, 15, v0')
    p.i(f'v_lshl_add_u32 v1, v1, 7, {sB_}')
    p.i(f'v_lshl_add_u32 {v(VTRW)}, v3, 4, v1')
    p.i(f'v_lshlrev_b32 v3, 2, {v(R)}')
    p.i(f'v_xor_b32 v3, v3, {v(FB2)}')
    p.i(f'v_lshlrev_b32 {v(C1)}, 3, {v(C1)}')
    p.i(f'v_lshl_add_u32 v3, v3, 4, {v(C1)}')
    p.i('v_lshl_add_u32 v3, v2, 8, v3')
    p.i(f's_lshl_b32 {sB_}, {sRH}, 12')
    p.i(f's_lshl_b32 {sC_}, {sCH}, 7')
    p.i(f's_add_u32 {sB_}, {sB_}, {sC_}')
    p.i(f's_add_u32 {sB_}, {sB_}, {WBASE}')
    p.i(f'v_xor_b32 {v(AW[0][0])}, {sB_}, v3')
    p.i('v_bfe_u32 v3, v0, 3, 1')
    p.i(f'v_xor_b32 v3, {sCH}, v3')
    p.i(f'v_lshl_add_u32 v3, v3, 2, {v(FB2)}')
    p.i(f'v_lshl_add_u32 v3, v3, 4, {v(C1)}')
    p.i(f'v_lshl_add_u32 v2, v6, 2, {v(R)}')
    p.i('v_lshl_add_u32 v3, v2, 7, v3')
    p.i(f'v_add_u32 {v(A2T[0])}, {sM0X}, v3')
    p.i('v_lshrrev_b32 v2, 4, v0')
    p.i('v_and_b32 v3, 15, v0')
    p.i('v_lshlrev_b32 v1, 2, v2')
    p.i('v_xor_b32 v1, v1, v3')
    p.i('v_mul_u32_u24 v2, 3584, v2')
    p.i(f'v_lshl_add_u32 {v(VW[0])}, v1, 4, v2')
    p.i('v_and_b32 v1, 7, v1')
    p.i('v_lshrrev_b32 v2, 3, v0')
    p.i('v_lshlrev_b32 v2, 10, v2')
    p.i(f'v_lshl_add_u32 {v(VW2[0])}, v1, 4, v2')
    p.i(f's_lshl_b32 {sB_}, {sCH}, 11')
    p.i(f's_add_u32 {sB_}, {sB_}, {EX}')
    p.i(f'v_lshl_add_u32 v3, v3, 3, {sB_}')
    p.i(f'v_lshl_add_u32 {v(VEXR)}, {v(VSIG)}, 7, v3')
    p.i(f's_mul_i32 {sC_}, {sRH}, 384')
    p.i(f's_add_u32 {sB_}, {sB_}, {sC_}')
    p.i(f'v_lshl_add_u32 {v(VEXZ)}, v0, 3, {sB_}')
    p.i('v_and_b32 v1, 31, v0')
    p.i('v_lshlrev_b32 v2, 13, v6')
    p.i(f'v_add_lshl_u32 {v(VXS)}, v2, v1, 1')
    p.i(f's_lshl_b32 {sB_}, {sW}, 7')
    p.i(f's_add_u32 {sB_}, {sB_}, {STATM}')
    p.i(f'v_lshl_add_u32 {v(VSTW)}, v1, 2, {sB_}')
    p.i(f'v_lshlrev_b32 {v(VRSA)}, 6, {v(VSIG)}')
    p.i(f'v_add_u32 {v(VRSA)}, {STATR}, {v(VRSA)}')
    p.i(f's_lshl_b32 {sB_}, {sW}, 9')
    p.i(f's_add_u32 {sB_}, {sB_}, {CSX}')
    p.i(f'v_lshl_add_u32 {v(VCSW)}, v0, 2, {sB_}')
    p.i(f'v_lshlrev_b32 {v(VLG)}, 4, v0')
    if OPT['shadow']:
        p.i('v_lshrrev_b32 v1, 3, v0')
        p.i('v_cmp_eq_u32 vcc, 3, v1')
        p.i(f'v_add_u32 v1, {SHADOW - 384}, {v(VLG)}')
        p.i(f'v_cndmask_b32 {v(VLG)}, {v(VLG)}, v1, vcc')
    p.i(f's_lshl_b32 {sB_}, {sRH}, 10')
    p.i(f'v_add_u32 {v(VH20)}, {sB_}, {v(VLG)}')


def bg_srd(p):
    mk_srd(p, SW1, P_W1, T('offW1'), T('sizeW1'))
    mk_srd(p, SW2, P_W2, T('offW2'), 1792 * 1024 - 896)
    p.i(f's_bitcmp1_b32 {T("HS")}, 11')
    p.i(f's_cselect_b64 s[{SCRE}:{SCRE + 1}], {sp(P_CIM)}, {sp(P_CRE)}')
    p.i(f's_cselect_b64 s[{SCIM}:{SCIM + 1}], {sp(P_CRE)}, {sp(P_CIM)}')
    mk_srd(p, SCRE, SCRE, T('offC'), 65536 - 896)
    mk_srd(p, SCIM, SCIM, T('offC'), 65536 - 896)
    p.i(f's_add_u32 s{sFL}, s{SH}, {T("poll")}')
    p.i(f's_addc_u32 s{sFL + 1}, s{SH + 1}, 0')
    p.i(f's_and_b32 {T("offC")}, {sW}, 1')
    p.i(f's_lshl_b32 {T("offC")}, {T("offC")}, 15')


def bg_vec(p):
    if OPT['vt']:
        p.wvm('q1')
    p.i(f's_lshr_b32 {sB_}, {T("HS")}, 7')
    p.i(f's_and_b32 {sB_}, {sB_}, 0x60')
    p.i(f'v_xor_b32 {v(A2C[0])}, {sB_}, {v(A2C[0])}')
    for i in range(1, 4):
        p.i(f'v_add_u32 {v(VW[i])}, {13312 * i}, {v(VW[0])}')
        p.i(f'v_add_u32 {v(VW2[i])}, {7168 * i}, {v(VW2[0])}')
        p.i(f'v_xor_b32 {v(A2C[i])}, {32 * i}, {v(A2C[0])}')
    p.i(f'v_xor_b32 {v(AW[0][1])}, 4096, {v(AW[0][0])}')
    p.i(f'v_xor_b32 {v(AW[1][0])}, 64, {v(AW[0][0])}')
    p.i(f'v_xor_b32 {v(AW[1][1])}, {4096 + 64}, {v(AW[0][0])}')
    p.i(f'v_xor_b32 {v(A2T[1])}, 64, {v(A2T[0])}')
    p.i(f'v_mov_b32 {v(EA)}, 0')
    p.i(f'v_mov_b32 {v(EA + 1)}, 0')
    p.i(f'ds_write_b64 {v(VEXZ)}, {v(EA, 2)}', 'exz')
    p.i('v_and_b32 v1, 15, v0')
    p.i(f'v_lshl_add_u32 {v(VPUB)}, v1, 4, {T("aggV")}')
    assert CSX % 2048 == 0
    p.i(f'v_xor_b32 {v(VCSR)}, 1024, {v(VCSW)}')
    p.i(f'v_xor_b32 {v(VH2[1])}, 1024, {v(VH2[0])}')
    p.i(f'v_mov_b32 {v(VFF)}, 0x80000000')
    p.i(f'v_writelane_b32 {v(VFF)}, {T("ff0")}, 0')
    p.i(f'v_writelane_b32 {v(VFF)}, {T("ff1")}, 1')


def bg_params(p):
    A_, B_, D_ = PT, PT + 1, PT + 2
    Tt = 176
    p.wvm('par')
    p.i(f'v_lshlrev_b32 {v(A_)}, 16, {v(A_)}')
    p.i(f'v_lshlrev_b32 {v(B_)}, 16, {v(B_)}')
    p.i(f'v_lshlrev_b32 {v(D_)}, 16, {v(D_)}')
    p.i(f'v_mul_f32 {v(D_)}, 0x3fb8aa3b, {v(D_)}')
    p.i(f'v_exp_f32 {v(D_)}, {v(D_)}')
    p.i(f'v_mul_f32 {v(Tt + 4)}, {v(A_)}, {v(A_)}')
    bf16r(p, D_, D_)
    p.i(f'v_mul_f32 {v(Tt)}, {v(D_)}, {v(A_)}')
    p.i(f'v_mul_f32 {v(Tt + 1)}, {v(D_)}, {v(B_)}')
    p.i(f'v_mul_f32 {v(Tt)}, 0x3fb8aa3b, {v(Tt)}')
    p.i(f'v_exp_f32 {v(Tt)}, {v(Tt)}')
    p.i(f'v_mul_f32 {v(Tt + 1)}, 0.15915494, {v(Tt + 1)}')
    p.i(f'v_rndne_f32 {v(Tt + 2)}, {v(Tt + 1)}')
    p.i(f'v_sub_f32 {v(Tt + 1)}, {v(Tt + 1)}, {v(Tt + 2)}')
    p.i(f'v_cos_f32 {v(Tt + 2)}, {v(Tt + 1)}')
    p.i(f'v_sin_f32 {v(Tt + 3)}, {v(Tt + 1)}')
    p.i(f'v_fmac_f32 {v(Tt + 4)}, {v(B_)}, {v(B_)}')
    p.i(f'v_mul_f32 {v(PL)}, {v(Tt)}, {v(Tt + 2)}')
    p.i(f'v_mul_f32 {v(PL + 1)}, -{v(Tt)}, {v(Tt + 3)}')
    p.i(f'v_rcp_f32 {v(Tt + 4)}, {v(Tt + 4)}')
    p.i(f'v_add_f32 {v(Tt + 2)}, -1.0, {v(PL)}')
    p.i(f'v_mul_f32 {v(Tt + 5)}, {v(Tt + 2)}, {v(A_)}')
    p.i(f'v_fma_f32 {v(Tt + 5)}, -{v(PL + 1)}, {v(B_)}, {v(Tt + 5)}')
    p.i(f'v_mul_f32 {v(Tt + 6)}, {v(PL + 1)}, {v(A_)}')
    p.i(f'v_fmac_f32 {v(Tt + 6)}, {v(Tt + 2)}, {v(B_)}')
    p.i(f'v_add_f32 {v(Tt + 4)}, {v(Tt + 4)}, {v(Tt + 4)}')
    p.i(f'v_mul_f32 {v(PK1)}, {v(Tt + 5)}, {v(Tt + 4)}')
    p.i(f'v_mul_f32 {v(PK1 + 1)}, {v(Tt + 6)}, {v(Tt + 4)}')
    t0, t1, t2, La, Lb = 184, 186, 188, 190, 192
    csq(p, t0, PL)
    csq(p, t1, t0)
    csq(p, t0, t1)
    csq(p, PL16, t0)

    def sel(dst, src, condreg, bit):
        p.i(f'v_and_b32 v1, {1 << bit}, {condreg}')
        p.i('v_cmp_ne_u32 vcc, 0, v1')
        p.i(f'v_cndmask_b32 {v(dst)}, 1.0, {v(src)}, vcc')
        p.i(f'v_cndmask_b32 {v(dst + 1)}, 0, {v(src + 1)}, vcc')
    csq(p, La, PL16)
    sel(t0, PL16, v(VSIG), 0)
    sel(t1, La, v(VSIG), 1)
    cmul(p, t2, t0, t1)
    csq(p, Lb, La)
    sel(t0, Lb, v(VSIG), 2)
    cmul(p, PPW, t2, t0)
    csq(p, La, Lb)
    csq(p, Lb, La)
    csq(p, PL512, Lb)
    sel(t0, La, 'v0', 4)
    sel(t1, Lb, 'v0', 5)
    cmul(p, PL128Q, t0, t1)


def stat_fetch(p, maybe=False):
    p.i(f'v_and_b32 {v(CL)}, 31, v0')
    p.i(f'v_lshlrev_b32 {v(CL)}, 3, {v(CL)}')
    p.i(f'buffer_load_dwordx2 {v(VG, 2)}, {v(CL)}, {srd(SH)}, {T("statF")} offen sc1', None if maybe else 'stf', maybe=maybe)


def stat_consume(p):
    p.wvm('stf')
    p.i(f's_mov_b32 {sA}, 0')
    p.label('L_st')
    p.i(f'v_cmp_ne_u32 vcc, {sTAG}, {v(VG + 1)}')
    p.i('s_cbranch_vccz L_st_ok')
    stat_fetch(p, True)
    p.i(f's_add_u32 {sA}, {sA}, 1')
    p.raw('  s_waitcnt vmcnt(0)')
    p.i(f's_cmp_lt_u32 {sA}, 0x20000')
    p.i('s_cbranch_scc1 L_st')
    p.label('L_st_ok')
    p.i(f'v_and_b32 {v(VG + 1)}, {sMASK}, {v(VG)}')
    p.i(f'v_rcp_f32 {v(VG + 1)}, {v(VG + 1)}')
    p.i(f'v_lshlrev_b32 {v(VG)}, 16, {v(VG)}')
    p.i(f'ds_write2_b32 {v(VSTW)}, {v(VG)}, {v(VG + 1)} offset0:0 offset1:128', 'stw')


def stat_reads(p):
    p.i(f'ds_read2_b32 {v(M0_, 2)}, {v(VSTA)} offset0:0 offset1:128', 'str')
    p.i(f'ds_read2_b32 {v(M1_, 2)}, {v(VSTA)} offset0:32 offset1:160', 'str')
    for k in range(4):
        p.i(f'ds_read_b128 {v(RS + 4 * k, 4)}, {v(VRSA)} offset:{16 * k}', 'rs')
    p.i('v_cmp_gt_u32 vcc, 32, v0')
    for r in (1, 2, 3):
        p.i(f'v_mov_b32 {v(AUG[0] + r)}, 0')
        p.i(f'v_mov_b32 {v(AUG[1] + r)}, 0')
    p.wlg('str')
    for k, m in enumerate((M0_, M1_)):
        p.i(f'v_xor_b32 v1, 0x80000000, {v(m)}')
        p.i(f'v_perm_b32 v1, v1, v1, {sPERM}')
        p.i(f'v_cndmask_b32 {v(AUG[k])}, 0, v1, vcc')


def split_cs(p, dst, src):
    p.i(f'v_and_b32 v1, {sMASK}, {src}')
    p.i(f'v_sub_f32 v1, {src}, v1')
    p.i(f'v_perm_b32 {v(dst)}, v1, {src}, {sPERM}')


class W2Stream:
    def __init__(self):
        self.next_issue = 0
        self.cur = []
        self.free = []
        self.region = {}
        self.done_at = {}
        self.read_next = 0
        self.rq = []
        self.release = []
        self.prev_reader = {}
        self.used = 0

    def block_groups(self, b, reg):
        tag = ('w2', b)
        G = []
        for h in range(2):
            q = Prog()
            if h == 0 and reg in self.prev_reader:
                q.wlg(('w2r', self.prev_reader[reg]))
            if b >= 4:
                u = 2 * (b - 4) + h
                q.i(f's_add_u32 m0, {sM0X}, {reg * 16384 + 2048 * h}')
                q.i(f's_lshl_b32 {sW2O}, {T(f"U{u % 7}")}, 3')
                if u >= 7:
                    q.i(f's_add_u32 {sW2O}, {sW2O}, 32768')
                for i in range(2):
                    q.i(f'buffer_load_dwordx4 {v(VW2[i])}, {srd(SW2)}, {sW2O} offen offset:{1024 * i} lds', tag)
            else:
                q.i(f's_add_u32 m0, {sM0X}, {reg * 16384}')
                q.i(f's_xor_b32 {sW2O}, {T("offC")}, {(b & 1) * 32768}')
                for i in (2 * h, 2 * h + 1):
                    q.i(f'buffer_load_dwordx4 {v(VX[i])}, {srd(SCIM if b >> 1 else SCRE)}, {sW2O} offen offset:{1024 * i} lds', tag)
            G.append(q.items)
        return G

    def read_groups(self, b):
        off = self.region[b] * 16384
        tag = ('w2r', b)
        L = []
        if b >= 4:
            for sub in range(2):
                for bb in range(2):
                    for e2 in range(2):
                        d = 16 * b + 8 * sub + 4 * bb + 2 * e2
                        L.append(Ins(f'ds_read_b64_tr_b16 {a(d, 2)}, {v(A2T[bb])} offset:{off + 2048 * sub + 1024 * e2}', tag))
        else:
            for u in range(4):
                L.append(Ins(f'ds_read_b128 {a(16 * b + 4 * u, 4)}, {v(A2C[u])} offset:{off}', tag))
        G = [[x] for x in L]
        G[0] = [('wvm', (('w2', b),))] + G[0]
        return G

    def tick(self, t, budget, lat):
        out = []
        for (tt, reg, b) in list(self.release):
            if tt <= t:
                self.free.append(reg)
                self.prev_reader[reg] = b
                self.release.remove((tt, reg, b))
        b = self.read_next
        if b >= 4 and t < 100:
            lat = OPT['w2latf']
        if not self.rq and b < (7 if OPT['w2defer'] and t < 100 else 11) and b in self.done_at and self.done_at[b] + lat <= t and t >= 2 * b + 2:
            self.rq += self.read_groups(b)
            self.release.append((t + (len(self.rq) + OPT['rdsplit'] - 1) // OPT['rdsplit'], self.region[b], b))
            self.read_next += 1
            print('w2 read', b, 'at', t)
        k_ = OPT['rdsplit'] if t < 60 else 99
        out += self.rq[:k_]
        self.rq = self.rq[k_:]
        self.used = 0
        while budget > 0:
            if not self.cur:
                if self.next_issue >= 11 or not self.free:
                    break
                b = self.next_issue
                reg = self.free.pop(0)
                self.region[b] = reg
                self.cur = self.block_groups(b, reg)
                self.next_issue += 1
            out.append(self.cur.pop(0))
            budget -= 1
            self.used += 1
            if not self.cur:
                self.done_at[self.next_issue - 1] = t
        return out

    def finished(self):
        return self.next_issue >= 11 and not self.cur and self.read_next >= 11


W2 = W2Stream()


def mf32(d, x, y, first):
    return Ins(f'v_mfma_f32_32x32x16_bf16 {d}, {x}, {y}, {"0" if first else d}')


def sel_mf(k, frag, first):
    d = v(CS[k], 4)
    return Ins(f'v_mfma_f32_16x16x32_bf16 {d}, {v(SEL, 4)}, {frag}, {"0" if first else d}')


def l1_reads(c):
    slot = c % 4
    L = []
    for pos in range(4):
        n = 4 * c + pos
        L.append(f'ds_read_b128 {a(8 * n, 4)}, {v(AX[pos])} offset:{slot * 16384}')
        L.append(f'ds_read_b128 {v(BSB + 16 * (c & 1) + 4 * pos, 4)}, {v(AB[pos])} offset:{slot * 8192}')
        L.append(f'ds_read_b128 {a(8 * n + 4, 4)}, {v(AX[pos])} offset:{slot * 16384 + 4096}')
    return [[Ins(t, ('r1', c))] for t in L]


def l1_mfmas(c):
    ms, sels = [], []
    for pos in range(4):
        n = 4 * c + pos
        bs = v(BSB + 16 * (c & 1) + 4 * pos, 4)
        ms += [mf32(v(ACC_S[0], 16), a(8 * n, 4), bs, n == 0), mf32(v(ACC_S[1], 16), a(8 * n + 4, 4), bs, n == 0)]
        sels.append(sel_mf(0, bs, n == 0))
    return sels + ms, [2] * 4 + [6] * 8


def w_reads(n):
    c, pos = n // 4, n % 4
    f = WFR[n & 1]
    wo = wslot(c) * 16384 + (pos >> 1) * 8192
    L = []
    for ct in range(2):
        for e2 in range(2):
            L.append(f'ds_read_b64_tr_b16 {v(f + 4 * ct + 2 * e2, 2)}, {v(AW[ct][pos & 1])} offset:{wo + 1024 * e2}')
    return [[Ins(t, ('fr', n))] for t in L]


def cost(g):
    c = 0
    for x in g:
        if isinstance(x, Ins):
            c += OPT['cwr'] if x.mn == 'ds_write_b128' else (OPT['crd'] if x.cls == 'ds' else 1)
    return c


def take(bg, budget, timed, n, done):
    out = []
    while sum(cost(g) for g in out) < budget:
        if not bg or isinstance(bg[0], str):
            if bg and bg[0].startswith('DONE:'):
                done.add(bg[0][5:])
            if bg and bg[0].startswith('GATE:'):
                if int(bg[0][5:]) > n:
                    break
            if bg and bg[0].startswith('BAR'):
                nb = n + 1
                while nb % 4 != 3:
                    nb += 1
                bg[0] = f'GATE:{nb}'
                print('bar gate at', n, '->', nb)
                continue
            if bg and bg[0].startswith('DELAY:'):
                bg[0] = f'GATE:{n + int(bg[0][6:])}'
                print('delay at', n, '->', bg[0])
                continue
            for t in list(timed):
                if t[1] <= n and all(x in done for x in t[2]):
                    print('timed', t[0], 'at', n)
                    out += t[3]
                    done.add(t[0])
                    timed.remove(t)
            if not bg:
                break
            bg.pop(0)
            continue
        out.append(bg.pop(0))
    if bg and isinstance(bg[0], str) and bg[0].startswith('DELAY:') and OPT['early']:
        bg[0] = f'GATE:{n + int(bg[0][6:])}'
    return out


def loop1(p):
    bg = []
    done = set()
    fns = ([] if OPT['vt'] or OPT['sp'] else [bg_seeds]) + [bg_srd, bg_vec, bg_params]
    for fn in fns:
        bg += (['GATE:1'] if fn is bg_params else []) + singles(items_of(fn)) + ['DONE:' + fn.__name__]
    timed = [('stc', 7, [], [items_of(stat_consume)])]
    for c in range(8):
        p.wvm(('dx', c))
        if c:
            p.wlg(('r1', c - 1))
        p.i('s_barrier')
        stamp(p, True)
        mem = []
        if c == 4:
            mem.append(items_of(stat_fetch))
        if c <= 4:
            mem += dma_xb(c + 3)
        else:
            assert 'bg_vec' in done
            mem += dma_w(c - 5)
            W2.free.append((c - 1) % 4)
            if c >= OPT['w2it']:
                mem += W2.tick(4 * (c - 8) - 2, OPT['w2l1'], 99)
        if c == 0 and OPT['stl']:
            b_ = singles(items_of(late_stats))
        else:
            b_ = take(bg, OPT['per1'] if c < 7 else 999, timed, c, done)
        if OPT['x1'] & 1:
            if c == 0:
                p.i(f's_mov_b32 s{SX + 2}, 0')
                p.i(f's_mov_b32 s{SB + 2}, 0')
        rd1 = l1_reads(c)
        if OPT['x1'] & 2:
            rd1 = rd1[:2]
        if OPT['x1'] & 4 and c <= 4:
            tagless = [[x for x in g if not (isinstance(x, Ins) and x.cls == 'vmem' and ' lds' in x.text)] for g in mem[:-1]]
            mem = tagless + [mem[-1][1:]]
        if OPT['x1'] & 8:
            F = mix([], mem, [])
            F = rd1[:6] + F + rd1[6:] + b_
        else:
            if OPT['split2'] & 1:
                mem = [y + [None] for g in mem for y in split_v(g)]
            F = mix(rd1, mem, b_)
        if c:
            ms, w = l1_mfmas(c - 1)
            place(p, ms, w, F)
        else:
            for g in F:
                p.items.extend(x for x in g if x is not None)
    assert not bg and not timed
    p.wvm(('dw', 0))
    p.wlg(('r1', 7), 'stw', 'exz')
    p.i('s_barrier')
    stamp(p, 2)
    W2.free.append(3)
    ms, w = l1_mfmas(7)
    q = Prog()
    stat_reads(q)
    split_cs(q, BSB, v(CS[0]))
    F = mix(w_reads(0), W2.tick(-1, OPT['w2l1'], 99), singles(q.items))
    place(p, ms, w, F)
    for k in range(2):
        p.items.append(mf32(v(ACC_S[k], 16), v(AUG[k], 4), v(BSB, 4), False))


def ssm_a1w(p):
    p.wlg('rs')
    cur = U
    for r in range(16):
        u, d0, d1 = U + 2 * r, ACC_S[0] + r, ACC_S[1] + r
        p.i(f'v_mul_f32 {v(d0)}, {v(d0)}, {v(RS + r)}')
        p.i(f'v_mul_f32 {v(d1)}, {v(d1)}, {v(RS + r)}')
        p.i(f'v_mul_f32 {v(u)}, {v(d0)}, {v(PK1)}')
        p.i(f'v_mul_f32 {v(u + 1)}, {v(d0)}, {v(PK1 + 1)}')
        p.i(f'v_fmac_f32 {v(u)}, {v(d1)}, {v(PK1 + 1)}')
        p.i(f'v_fma_f32 {v(u + 1)}, -{v(d1)}, {v(PK1)}, {v(u + 1)}')
        if r:
            dst = EA if (r & 1) else EB
            cmac(p, dst, cur, PL, u)
            cur = dst
    p.i(f'ds_write_b64 {v(VEXR)}, {v(EA, 2)} offset:{7 * 128}', 'ex')


def ssm_b1w(p):
    p.wlg('exr')
    for k in range(1, 7):
        cmac(p, CL if k == 6 else EXR + 2 * k, EXR + 2 * k - 2, PL16, EXR + 2 * k)
    cmac(p, EA, CL, PL16, EA)
    p.i(f'v_mov_b32 {v(PUB)}, {v(EA)}')
    p.i(f'v_mov_b32 {v(PUB + 2)}, {v(EA + 1)}')
    p.i(f'buffer_store_dwordx4 {v(PUB, 4)}, v2, {srd(SH)}, {T("aggB")} offen sc1', 'pub')


def cmac_pk(p, dst, x, L, c):
    assert dst != x
    p.i(f'v_pk_fma_f32 {v(dst, 2)}, {v(x, 2)}, {v(L, 2)}, {v(c, 2)} op_sel:[0,0,0] op_sel_hi:[1,0,1]')
    p.i(f'v_pk_fma_f32 {v(dst, 2)}, {v(x, 2)}, {v(L, 2)}, {v(dst, 2)} op_sel:[1,1,0] op_sel_hi:[0,1,1] neg_lo:[0,1,0]')


def ssm_a0(p):
    for r in range(16):
        p.i(f'v_permlane16_swap_b32 {v(ACC_S[0] + r)}, {v(ACC_S[1] + r)}')


def ssm_a1(p):
    p.wlg('rs')
    cur = U
    for r in range(16):
        u = v(U + 2 * r, 2)
        s0, k0 = bc(ACC_S[0] + r)
        s1, k1 = bc(ACC_S[1] + r)
        s2, k2 = bc(RS + r)
        p.i(f'v_pk_mul_f32 {u}, {s0}, {v(PK1, 2)} op_sel:[{k0},0] op_sel_hi:[{k0},1]')
        p.i(f'v_pk_fma_f32 {u}, {s1}, {v(PK1, 2)}, {u} op_sel:[{k1},1,0] op_sel_hi:[{k1},0,1] neg_hi:[0,1,0]')
        p.i(f'v_pk_mul_f32 {u}, {u}, {s2} op_sel:[0,{k2}] op_sel_hi:[1,{k2}]')
        if r:
            dst = EA if (r & 1) else EB
            cmac_pk(p, dst, cur, PL, U + 2 * r)
            cur = dst
    assert cur == EA
    p.i(f'ds_write_b64 {v(VEXR)}, {v(EA, 2)} offset:{7 * 128}', 'ex')


def ssm_a2(p):
    p.i(f'v_cmp_eq_u32 vcc, 7, {v(VSIG)}')
    p.i('v_mov_b32 v2, 0x80000000')
    p.i(f'v_mov_b32 {v(PUB + 1)}, {sTAG}')
    p.i(f'v_cndmask_b32 v2, v2, {v(VPUB)}, vcc')
    p.i(f'v_mov_b32 {v(PUB + 3)}, {sTAG}')


def ssm_b2(p):
    p.i('v_and_b32 v1, 31, v0')
    p.i(f'v_lshl_add_u32 v1, v1, 1, {T("offD")}')
    p.i(f'global_load_ushort {v(VD)}, v1, {sp(P_D)}', 'vd')
    p.i('v_lshrrev_b32 v1, 4, v0')
    p.i('v_lshlrev_b32 v1, 9, v1')
    p.i(f'v_sub_u32 v1, {v(VPUB)}, v1')
    for i in range(4):
        p.i(f'v_subrev_u32 {v(LBO + i)}, {512 + 2048 * i}, v1')
    for i in range(4):
        p.i(f'v_cmp_le_i32 vcc, 0, {v(LBO + i)}')
        p.i(f'v_cndmask_b32 {v(LBT + i)}, 0, {v(VTAG)}, vcc')


def ssm_b0(p):
    for k in range(7):
        p.i(f'ds_read_b64 {v(EXR + 2 * k, 2)}, {v(VEXR)} offset:{128 * k}', 'exr')


def ssm_b1(p):
    p.wlg('exr')
    for k in range(1, 7):
        cmac_pk(p, CL if k == 6 else EXR + 2 * k, EXR + 2 * k - 2, PL16, EXR + 2 * k)
    cmac_pk(p, EA, CL, PL16, EA)
    p.i(f'v_mov_b32 {v(PUB)}, {v(EA)}')
    p.i(f'v_mov_b32 {v(PUB + 2)}, {v(EA + 1)}')
    p.i(f'buffer_store_dwordx4 {v(PUB, 4)}, v2, {srd(SH)}, {T("aggB")} offen sc1', 'pub')


def lb_loads(p):
    for i in range(4):
        p.i(f'buffer_load_dwordx4 {v(LB + 4 * i, 4)}, {v(LBO + i)}, {srd(SH)}, {T("aggB")} offen sc1', 'lb')


def lb_check(p):
    p.i(f's_mov_b32 {sA}, 0')
    p.wvm('lb')
    p.label('L_lb')
    p.i('v_mov_b32 v3, 0')
    for i in range(4):
        p.i(f'v_xor_b32 v1, {v(LB + 4 * i + 1)}, {v(LBT + i)}')
        p.i(f'v_xor_b32 v2, {v(LB + 4 * i + 3)}, {v(LBT + i)}')
        p.i('v_or3_b32 v3, v1, v2, v3')
    p.i('v_cmp_ne_u32 vcc, 0, v3')
    p.i('s_cbranch_vccz L_lb_ok')
    for i in range(4):
        p.i(f'buffer_load_dwordx4 {v(LB + 4 * i, 4)}, {v(LBO + i)}, {srd(SH)}, {T("aggB")} offen sc1', maybe=True)
    p.i(f's_add_u32 {sA}, {sA}, 1')
    p.raw('  s_waitcnt vmcnt(0)')
    p.i(f's_cmp_lt_u32 {sA}, 0x20000')
    p.i('s_cbranch_scc1 L_lb')
    p.label('L_lb_ok')
    p.i('s_nop 0')


def ssm_c1(p):
    for i in range(4):
        p.i(f'v_mov_b32 {v(LB + 4 * i + 1)}, {v(LB + 4 * i + 2)}')
    for i in (2, 1, 0):
        cmac_pk(p, LB + 4 * i, LB + 4 * (i + 1), PL512, LB + 4 * i)
    p.i(f'v_pk_mul_f32 {v(EA, 2)}, {v(LB, 2)}, {v(PL128Q, 2)} op_sel:[0,0] op_sel_hi:[1,0]')
    p.i(f'v_pk_fma_f32 {v(EA, 2)}, {v(LB, 2)}, {v(PL128Q, 2)}, {v(EA, 2)} op_sel:[1,1,0] op_sel_hi:[0,1,1] neg_lo:[0,1,0]')
    for sw in ('v_permlane16_swap_b32', 'v_permlane32_swap_b32'):
        p.i(f'v_mov_b32 {v(EB)}, {v(EA)}')
        p.i(f'v_mov_b32 {v(EB + 1)}, {v(EA + 1)}')
        p.i(f'v_xor_b32 v2, 16, {v(VTRW)}')
        p.i(f'{sw} {v(EA)}, {v(EB)}')
        p.i(f'{sw} {v(EA + 1)}, {v(EB + 1)}')
        p.i(f'v_pk_add_f32 {v(EA, 2)}, {v(EA, 2)}, {v(EB, 2)}')
    cmac_pk(p, CL, EA, PPW, CL)
    prev = CL
    for r in range(16):
        cmac_pk(p, U + 2 * r, prev, PL, U + 2 * r)
        prev = U + 2 * r


def ssm_c1w(p):
    for i in range(4):
        p.i(f'v_mov_b32 {v(LB + 4 * i + 1)}, {v(LB + 4 * i + 2)}')
    for i in (2, 1, 0):
        cmac(p, LB + 4 * i, LB + 4 * (i + 1), PL512, LB + 4 * i)
    cmul(p, EA, LB, PL128Q)
    for sw in ('v_permlane16_swap_b32', 'v_permlane32_swap_b32'):
        p.i(f'v_mov_b32 {v(EB)}, {v(EA)}')
        p.i(f'v_mov_b32 {v(EB + 1)}, {v(EA + 1)}')
        p.i(f'v_xor_b32 v2, 16, {v(VTRW)}')
        p.i(f'{sw} {v(EA)}, {v(EB)}')
        p.i(f'{sw} {v(EA + 1)}, {v(EB + 1)}')
        p.i(f'v_add_f32 {v(EA)}, {v(EA)}, {v(EB)}')
        p.i(f'v_add_f32 {v(EA + 1)}, {v(EA + 1)}, {v(EB + 1)}')
    cmac(p, CL, EA, PPW, CL)
    prev = CL
    for r in range(16):
        cmac(p, U + 2 * r, prev, PL, U + 2 * r)
        prev = U + 2 * r


def ssm_c2(p):
    RE, IM = 144, 152
    for k in range(8):
        p.i(f'v_cvt_pk_bf16_f32 {v(RE + k)}, {v(U + 4 * k)}, {v(U + 4 * k + 2)}')
        p.i(f'v_cvt_pk_bf16_f32 {v(IM + k)}, {v(U + 4 * k + 1)}, {v(U + 4 * k + 3)}')
        if k == 3:
            p.i(f'ds_write_b128 {v(VTRW)}, {v(RE, 4)}', 'trw')
        if k == 5:
            p.i(f'ds_write_b128 {v(VTRW)}, {v(IM, 4)} offset:2048', 'trw')
    p.i(f'ds_write_b128 v2, {v(RE + 4, 4)}', 'trw')
    p.i(f'ds_write_b128 v2, {v(IM + 4, 4)} offset:2048', 'trw')
    O = 128
    for part in range(2):
        for rho in range(2):
            for e2 in range(2):
                d = O + (part * 2 + rho) * 4 + 2 * e2
                p.i(f'ds_read_b64_tr_b16 {v(d, 2)}, {v(VTRR)} offset:{2048 * part + 512 * e2 + 64 * (rho ^ e2)}', ('trr', part, rho))


def ssm_st(k):
    part, rho = k >> 1, k & 1
    return [('wlg', (('trr', part, rho),)),
            Ins(f'buffer_store_dwordx4 {v(128 + 4 * k, 4)}, {v(VLG)}, {srd(SH)}, {T("hsSt")} offen offset:{2048 * part + 1024 * rho} sc1', 'hs')]


def ssm_flag(p):
    p.wvm('hs')
    p.i(f'buffer_store_dword {v(VTAG)}, {v(VL0)}, {srd(SH)}, {sFS} offen sc1', 'sfl')


LEFT = []
NIS = [0]


def loop2(p):
    lbs = singles(items_of(lb_loads))
    a1 = singles(items_of(ssm_a1w)) + ['GATE:11'] if OPT['aw'] else [items_of(ssm_a1), 'GATE:3']
    b1 = singles(items_of(ssm_b1w)) if OPT['aw'] else ['GATE:4', items_of(ssm_b1)]
    if OPT['early']:
        def blk(q):
            ssm_a0(q)
            ssm_a1(q)
            ssm_a2(q)
            q.wlg('ex')
            q.i('s_barrier')
            ssm_b0(q)
        head = [f'GATE:{OPT["early"] - 1}', items_of(blk), 'DELAY:1', items_of(ssm_b1)]
    else:
        head = ['GATE:1'] + singles(items_of(ssm_a0)) + ['GATE:2'] + a1 + singles(items_of(ssm_b0)) + singles(items_of(ssm_a2)) + b1
    bg = head + singles(items_of(ssm_b2)) + \
        [f'GATE:{OPT["lbat"]}'] + lbs[:2] + ['DELAY:1'] + lbs[2:] + \
        ([f'GATE:{OPT["lbchk"]}', items_of(lb_check)] + singles(items_of(ssm_c1w)) if OPT['cw'] else
         [f'GATE:{OPT["lbchk"]}', items_of(lb_check) + items_of(ssm_c1) + (items_of(ssm_c2) if OPT['c2a'] else [])]) + \
        ([] if OPT['c2a'] else singles(items_of(ssm_c2)) + ['DELAY:1']) + \
        [ssm_st(0), ssm_st(1)] + ([] if OPT['c2a'] == 2 else ['DELAY:1']) + [ssm_st(2), ssm_st(3), f'DELAY:{OPT["sflat"]}', items_of(ssm_flag)]
    S2 = p2_steps()
    done = set()
    pend = dma_w(3) if OPT['wring'] == 4 else []
    credit = 0.0
    ex_seen = False
    for n in range(32):
        c, pos = n // 4, n % 4
        f = WFR[n & 1]
        W0, W1 = v(f, 4), v(f + 4, 4)
        X0, X1 = a(8 * n, 4), a(8 * n + 4, 4)
        ms = [mf32(v(ACC_F[0][0], 16), W0, X0, n == 0), mf32(v(ACC_F[1][0], 16), W0, X1, n == 0),
              mf32(v(ACC_F[0][1], 16), W1, X0, n == 0), mf32(v(ACC_F[1][1], 16), W1, X1, n == 0)]
        w = [6] * 4
        if pos in (0, 2) or c == 7:
            s1, s2 = sel_mf(1, W0, n == 0), sel_mf(2, W1, n == 0)
            if n in (26, 31) or (OPT['selpair'] and pos != 3):
                ms, w = [s1, s2] + ms, [2, 2] + w
            else:
                ms, w = [ms[0], ms[1], s1, ms[2], ms[3], s2], [6, 6, 2, 6, 6, 2]
        p.wlg(('fr', n))
        if pos == 0:
            stamp(p, True)
        if n >= OPT['ls0'] and (n - OPT['ls0']) % OPT['lsd'] == 0:
            stamp(p, 3)
        rd = w_reads(n + 1) if n < 31 else []
        if pos == 3 and c < 7:
            pre = Prog()
            pre.items.append(ms[0])
            pre.wvm(('dw', c + 1))
            tags = []
            if any(isinstance(x, Ins) and x.tag == 'ex' for x in p.items):
                tags.append('ex')
            else:
                assert n < (11 if OPT['aw'] else 3), 'ex write too late'
            if n == 27:
                tags.append('csw')
            if tags:
                pre.wlg(*tags)
            pre.i('s_barrier')
            ms[0] = pre.items
            if c + OPT['wring'] < 8:
                pend = dma_w(c + OPT['wring'])
        dm = []
        if pend and (pos in (3, 1) or n == 0):
            dm = [pend.pop(0)]
        extra = []
        if n == 26:
            for k in (1, 2):
                extra.append([Ins(f'ds_write_b32 {v(VCSW)}, {v(CS[k])} offset:{256 * (k - 1)}', 'csw')])
        if n == 27:
            for k in (1, 2):
                extra.append([Ins(f'ds_read_b32 {v(CSP + k - 1)}, {v(VCSR)} offset:{256 * (k - 1)}', 'csr')])
        b_ = take(bg, (OPT['per2'] if not (OPT['aw'] and n < 11) else 18) if n != 1 else 16, [], n, done) if n < 31 else []
        nv = sum(1 for g in dm + b_ for x in g if isinstance(x, Ins) and x.cls == 'vmem' and not x.maybe and 'x4' in x.mn)
        credit = min(credit + OPT['vmbud'] - nv, 3.9)
        w2 = W2.tick(n, int(credit / 2) if credit > 0 else 0, OPT['w2lat']) if not OPT['now2'] else []
        credit -= 2 * W2.used
        if n == 31:
            for k in (1, 2):
                t1, t2 = CS[0], CS[0] + 1
                extra.append([('wlg', ('csr',)), Ins(f'v_add_f32 {v(t2)}, {v(CS[k])}, {v(CSP + k - 1)}')])
                extra.append([Ins(f'v_and_b32 {v(t1)}, {sMASK}, {v(t2)}')])
                extra.append([Ins(f'v_sub_f32 {v(t1)}, {v(t2)}, {v(t1)}')])
                extra.append([Ins(f'v_perm_b32 {v(WFR[0] + 4 * (k - 1))}, {v(t1)}, {v(t2)}, {sPERM}')])
            extra = [[Ins('s_nop 2')], [Ins('s_nop 2')]] + extra
        if n == OPT['psissue'] and not OPT['spoll']:
            assert not bg
            extra.append(items_of(vpoll_issue))
        if n == 31 and OPT['spoll']:
            extra.append(poll_issue(32))
        hl = []
        if n > OPT['pscheck']:
            assert not bg
            for _ in range(OPT['hl2']):
                if NIS[0] < OPT['nhb']:
                    hl.append(h_loads(S2[NIS[0]], NIS[0]))
                    NIS[0] += 1
        mem_ = dm + w2 + hl
        if OPT['split2'] & 2:
            mem_ = [y for g in mem_ for y in (split_v(g) if any(isinstance(x, Ins) and x.cls == 'vmem' for x in g) else [g])]
            mem_ = [g + [None] for g in mem_]
        place(p, ms, w, mix(rd, mem_, b_) + extra)
        if n == OPT['pscheck']:
            vpoll_check(p)
    assert not pend
    LEFT.extend(bg)
    W0, W1 = v(WFR[0], 4), v(WFR[0] + 4, 4)
    X0, X1 = v(AUG[0], 4), v(AUG[1], 4)
    for m in (mf32(v(ACC_F[0][0], 16), W0, X0, False), mf32(v(ACC_F[1][0], 16), W0, X1, False),
              mf32(v(ACC_F[0][1], 16), W1, X0, False), mf32(v(ACC_F[1][1], 16), W1, X1, False)):
        p.items.append(m)


def ffn_pack(p):
    for ct in range(2):
        for rt in range(2):
            acc = ACC_F[rt][ct]
            rs, k = bc(R0_ if rt == 0 else R1_)
            for sub in range(2):
                for e in range(4):
                    r = acc + 8 * sub + 2 * e
                    p.i(f'v_pk_mul_f32 {v(r, 2)}, {v(r, 2)}, {rs} op_sel:[0,{k}] op_sel_hi:[1,{k}]')
                for e in range(4):
                    r = acc + 8 * sub + 2 * e
                    p.i(f'v_cvt_pk_bf16_f32 {v(acc + 8 * sub + e)}, {v(r)}, {v(r + 1)}')
                for e in range(4):
                    d = acc + 8 * sub + e
                    p.i(f'v_pk_max_i16 {v(d)}, {v(d)}, 0')
                if OPT['order'] == 0:
                    ffn_store(p, ct, rt, sub)


def ffn_addr(p):
    p.i(f's_add_u32 {sB_}, {T("hfSt")}, 4096')
    p.i(f's_min_u32 {sB_}, {sB_}, {WS_SIZE}')


def ffn_store(p, ct, rt, sub):
    acc = ACC_F[rt][ct]
    p.i(f'buffer_store_dwordx4 {v(acc + 8 * sub, 4)}, {v(VLG)}, {srd(SH)}, {sB_ if ct else T("hfSt")} offen offset:{2048 * sub + 1024 * rt} sc1', ('hf', ct))


VPL = 252


def vpoll_issue(p, maybe=False):
    p.i(f'v_and_b32 {v(VPL)}, 7, v0')
    p.i(f'v_lshlrev_b32 {v(VPL)}, 2, {v(VPL)}')
    p.i(f'buffer_load_dword {v(VPL + 1)}, {v(VPL)}, {srd(SH)}, {T("poll")} offen offset:32 sc1', None if maybe else 'vp', maybe=maybe)


def vpoll_check(p):
    p.wvm('vp')
    p.i(f's_mov_b32 {sA}, 0')
    p.label('L_vp')
    p.i(f'v_cmp_ne_u32 vcc, {sTAG}, {v(VPL + 1)}')
    p.i('s_cbranch_vccz L_vp_ok')
    vpoll_issue(p, True)
    p.i(f's_add_u32 {sA}, {sA}, 1')
    p.raw('  s_waitcnt vmcnt(0)')
    p.i(f's_cmp_lt_u32 {sA}, 0x20000')
    p.i('s_cbranch_scc1 L_vp')
    p.label('L_vp_ok')


def poll_issue(off):
    return [Ins(f's_load_dwordx8 s[8:15], {sp(sFL)}, {off} glc')]


def poll(p, name, off, issued=False):
    p.i(f's_mov_b32 {sA}, 0')
    if issued:
        p.i(f's_branch L_{name}_in')
    p.label(f'L_{name}')
    p.i(f's_load_dwordx8 s[8:15], {sp(sFL)}, {off} glc')
    p.label(f'L_{name}_in')
    p.i(f's_add_u32 {sA}, {sA}, 1')
    p.i(f's_cmp_lt_u32 {sA}, 0x20000')
    p.i('s_waitcnt lgkmcnt(0)')
    p.i(f's_cbranch_scc0 L_{name}_ok')
    for k in range(4):
        p.i(f's_cmp_eq_u64 s[{8 + 2 * k}:{9 + 2 * k}], s[58:59]')
        p.i(f's_cbranch_scc0 L_{name}')
    p.label(f'L_{name}_ok')


def p2_steps():
    C = [[(ps, 'c', part, u) for u in range(4) for part in range(2)] for ps in range(2)]
    F = [[[(ps, 'f', ct, i) for i in range(7)] for ct in range(2)] for ps in range(2)]
    k = OPT['nb0']
    return C[0] + C[1] + F[0][0] + F[1][0][:k] + F[0][1] + F[1][0][k:] + F[1][1]


def h_loads(st, n):
    d = HBUF[n % OPT['nhb']]
    q = Prog()
    base = T('HA') if st[0] == 0 else T('HB')
    if st[1] == 'f':
        q.i(f's_add_u32 {sHL}, {base}, {T(f"U{st[3]}")}')
        if st[2]:
            q.i(f's_add_u32 {sHL}, {sHL}, 4096')
    else:
        _, _, part, u = st
        q.i(f's_xor_b32 {sHL}, {T("HS")}, {4096 * u + 2048 * part}')
        q.i(f's_add_u32 {sHL}, {sHL}, {base}')
    for a_ in range(2):
        q.i(f'buffer_load_dwordx4 {v(d + 4 * a_, 4)}, {v(VH2[a_])}, {srd(SH)}, {sHL} offen sc1', ('h', n))
    return q.items


def w2_operand(st):
    if st[1] == 'f':
        u = 7 * st[2] + st[3]
        k = 4 + (u >> 1)
        return [a(16 * k + 8 * (u & 1) + 4 * b, 4) for b in range(2)], [k]
    _, _, part, u = st
    return [a(16 * (2 * part + b) + 4 * u, 4) for b in range(2)], [2 * part, 2 * part + 1]


def red_addr(p):
    for x in (1, 2, 3):
        p.i(f's_xor_b32 {sC_}, {sW}, {x}')
        p.i(f's_mul_i32 {sC_}, {sC_}, 12288')
        p.i(f's_add_u32 {sC_}, {sC_}, {REDB + (x - 1) * 4096}')
        p.i(f'v_lshl_add_u32 {v(VRW[x - 1])}, v0, 4, {sC_}')
    p.i(f's_mul_i32 {sC_}, {sW}, 12288')
    p.i(f's_add_u32 {sC_}, {sC_}, {REDB}')
    p.i(f'v_lshl_add_u32 {v(VRR)}, v0, 4, {sC_}')
    mk_srd(p, SXE, P_X, T('offXE'), 31 * 1024 + 64)
    mk_srd(p, SOUT, P_OUT, T('offOUT'), 31 * 2048 + 128)
    p.i(f'v_lshlrev_b32 {v(VO)}, 1, {v(VXS)}')


def skip_loads(p):
    for r in range(16):
        if r % 4 == 0:
            p.i(f's_movk_i32 {sC_}, {4096 * (r // 4)}')
        p.i(f'buffer_load_ushort {v(XS + r)}, {v(VXS)}, {srd(SXE)}, {sC_} offen offset:{1024 * (r % 4)}', 'xs')
    p.i(f'v_lshl_add_u32 v1, v6, 6, {T("skipL")}')
    for k in range(4):
        p.i(f'ds_read_b128 {v(MS + 4 * k, 4)}, v1 offset:{16 * k}', 'ms')
        p.i(f'ds_read_b128 {v(RS2 + 4 * k, 4)}, v1 offset:{512 + 16 * k}', 'ms')


def skip_calc(p):
    p.wvm('xs', 'vd')
    p.i(f'v_lshlrev_b32 {v(VD)}, 16, {v(VD)}')
    for r in range(16):
        p.i(f'v_lshlrev_b32 {v(XS + r)}, 16, {v(XS + r)}')
    p.wlg('ms')
    for r in range(0, 16, 2):
        x, m, rs = XS + r, MS + r, RS2 + r

        def rnd():
            p.i(f'v_cvt_pk_bf16_f32 v1, {v(m)}, {v(m + 1)}')
            p.i(f'v_lshlrev_b32 {v(m)}, 16, v1')
            p.i(f'v_and_b32 {v(m + 1)}, {sMASK}, v1')
        p.i(f'v_sub_f32 {v(m)}, {v(x)}, {v(m)}')
        p.i(f'v_sub_f32 {v(m + 1)}, {v(x + 1)}, {v(m + 1)}')
        rnd()
        p.i(f'v_mul_f32 {v(m)}, {v(m)}, {v(rs)}')
        p.i(f'v_mul_f32 {v(m + 1)}, {v(m + 1)}, {v(rs + 1)}')
        rnd()
        p.i(f'v_mul_f32 {v(m)}, {v(m)}, {v(VD)}')
        p.i(f'v_mul_f32 {v(m + 1)}, {v(m + 1)}, {v(VD)}')
        rnd()
        p.i(f'v_add_f32 {v(x)}, {v(x)}, {v(m)}')
        p.i(f'v_add_f32 {v(x + 1)}, {v(x + 1)}, {v(m + 1)}')


def redA_1(p):
    for x in (1, 2, 3):
        acc = ACC2[x >> 1][x & 1]
        for k in range(4):
            p.i(f'ds_write_b128 {v(VRW[x - 1])}, {v(acc + 4 * k, 4)} offset:{REDA - REDB + 1024 * k}', 'rwa')


XG = 24
XR2 = 176


def gpos(r):
    return 4 * (r // 3) + r % 3


def nx():
    return {0: 6, 1: 3, 2: 4}[OPT['xbf']]


def redA_2(p):
    T_ = 176
    p.wlg('rwa')
    p.i('s_barrier')
    for k in range(4):
        for x in range(3):
            p.i(f'ds_read_b128 {v(T_ + 16 * x + 4 * k, 4)}, {v(VRR)} offset:{REDA - REDB + 4096 * x + 1024 * k}', ('rra', k))
    acc = ACC2[0][0]
    p.i(f's_xor_b32 {sC_}, {sXO}, {8 * 4 * 8192}')
    p.i(f's_add_u32 {sD_}, {sC_}, 4096')
    if OPT['xbf'] == 2:
        p.i('s_mov_b32 s8, 0x07060501')
        p.i('s_mov_b32 s9, 0x07060502')
        p.i('s_mov_b32 s10, 0x07060503')
    for q in range(nx()):
        p.i(f'v_mov_b32 {v(XG + 4 * q + 3)}, {v(VTAG)}')
    sent = 0
    for k in range(4):
        p.wlg(('rra', k))
        for e in range(4):
            r = 4 * k + e
            p.i(f'v_add_f32 {v(T_ + r)}, {v(T_ + r)}, {v(T_ + 16 + r)}')
            p.i(f'v_add_f32 {v(acc + r)}, {v(acc + r)}, {v(T_ + 32 + r)}')
        for e in range(4):
            r = 4 * k + e
            p.i(f'v_add_f32 {v(XG + gpos(r)) if not OPT["xbf"] else v(acc + r)}, {v(acc + r)}, {v(T_ + r)}')
        if OPT['xbf'] == 1:
            for e in (0, 2):
                r = 4 * k + e
                p.i(f'v_cvt_pk_bf16_f32 {v(XG + gpos(r // 2))}, {v(acc + r)}, {v(acc + r + 1)}')
            have = 2 * k + 1
        elif OPT['xbf'] == 2:
            for e in range(3):
                p.i(f'v_perm_b32 {v(XG + 4 * k + e)}, {v(acc + 4 * k + e)}, {v(acc + 4 * k + 3)}, s{8 + e}')
            have = 3 * k + 2
        else:
            have = 4 * k + 3
        while sent < nx() and (3 * sent + 2 <= have or k == 3):
            p.i(f'buffer_store_dwordx4 {v(XG + 4 * sent, 4)}, {v(VLG)}, {srd(SH)}, {sC_ if sent < 4 else sD_} offen offset:{1024 * (sent & 3)} sc1', 'xst')
            sent += 1


def xch_load(p, maybe=False):
    if nx() > 4:
        p.i(f's_add_u32 {sD_}, {sXO}, 4096')
    for q in range(nx()):
        p.i(f'buffer_load_dwordx4 {v(XR2 + 4 * q, 4)}, {v(VLG)}, {srd(SH)}, {sXO if q < 4 else sD_} offen offset:{1024 * (q & 3)} sc1',
            None if maybe else 'xld', maybe=maybe)


def xch_check(p):
    p.i(f's_mov_b32 {sA}, 0')
    p.wvm('xld')
    p.label('L_px')
    for q in range(nx()):
        p.i(f'v_cmp_ne_u32 {"vcc" if q == 0 else "s[8:9]"}, {v(XR2 + 4 * q + 3)}, {v(VTAG)}')
        if q:
            p.i('s_or_b64 vcc, vcc, s[8:9]')
    p.i('s_cbranch_scc0 L_px_ok')
    xch_load(p, True)
    p.i(f's_add_u32 {sA}, {sA}, 1')
    p.raw('  s_waitcnt vmcnt(0)')
    p.i(f's_cmp_lt_u32 {sA}, 0x20000')
    p.i('s_cbranch_scc1 L_px')
    p.label('L_px_ok')


def xch_add(p, acc, r):
    if OPT['xbf'] == 1:
        src = v(XR2 + gpos(r // 2))
        p.i(f'v_lshlrev_b32 v2, 16, {src}')
        p.i(f'v_and_b32 v3, {sMASK}, {src}')
        p.i(f'v_pk_add_f32 {v(acc + r, 2)}, {v(acc + r, 2)}, v[2:3]')
    elif OPT['xbf'] == 2:
        b = XR2 + (r & ~3)
        if r & 2:
            p.i(f'v_perm_b32 v2, {v(b + 1)}, {v(b)}, s10')
            p.i(f'v_lshl_or_b32 {v(b + 3)}, {v(b + 2)}, 24, v2')
        p.i(f'v_pk_add_f32 {v(acc + r, 2)}, {v(acc + r, 2)}, {v(XR2 + r, 2)}')
    else:
        p.i(f'v_add_f32 {v(acc + r)}, {v(acc + r)}, {v(XR2 + gpos(r))}')
        p.i(f'v_add_f32 {v(acc + r + 1)}, {v(acc + r + 1)}, {v(XR2 + gpos(r + 1))}')


def transition(p):
    S = p2_steps()
    NH = OPT['nhb']
    for g in LEFT:
        if not isinstance(g, str):
            p.items.extend(g)
    t = 60
    while (W2.next_issue < 11 or W2.cur or W2.rq) if OPT['w2defer'] else not W2.finished():
        print('forced w2 tick')
        for g in W2.tick(t, 4, 0):
            p.items.extend(g)
        t += 1
    ffn_addr(p)
    G = singles(items_of(ffn_pack))
    k0 = OPT['vpat']
    for g in G[:k0]:
        p.items.extend(g)
    if OPT['spoll']:
        poll(p, 'ps', 32, True)
    elif OPT['pscheck'] >= 32:
        vpoll_check(p)
    stamp(p)
    hl = [h_loads(S[n], n) for n in range(NIS[0], min(NH, NIS[0] + OPT['htr']))]
    NIS[0] += len(hl)
    hf = OPT['hfirst']
    fl0 = [[('wvm', (('hf', 0),)), Ins(f'buffer_store_dword {v(VTAG)}, {v(VFF)}, {srd(SH)}, {sFF} offen sc1', 'ffl')]]
    rest = G[k0:]
    if OPT['ffl0'] < 0:
        kk = -OPT['ffl0'] - 1
        assert k0 + kk >= 52 and kk <= len(rest), 'flag 0 would precede its stores'
        rest = rest[:kk] + fl0 + rest[kk:]
    for g in hl[:hf] + rest + hl[hf:] if hf else mix([], hl, rest):
        p.items.extend(g)
    stamp(p)
    p.wlg(*[('w2r', b) for b in range(W2.read_next)])


def acc_of(ps, x):
    if ps == 0:
        return ('v', ACC2[x >> 1][x & 1])
    return ('v', BOWN) if x == 0 else ('a', BFOR[x - 1])


def rg(k, n, cnt):
    return v(n, cnt) if k == 'v' else a(n, cnt)


def step_mf(S, n, x):
    st = S[n]
    ops, _ = w2_operand(st)
    k, r = acc_of(st[0], x)
    first = (n == 0) if st[0] == 0 else st == (1, 'c', 0, 0)
    return mf32(rg(k, r, 16), v(HBUF[n % OPT['nhb']] + 4 * (x >> 1), 4), ops[x & 1], first)


def red_writes(ps, x):
    k, r = acc_of(ps, x)
    off = (REDA - REDB) if ps == 0 else 0
    return [[Ins(f'ds_write_b128 {v(VRW[x - 1])}, {rg(k, r + 4 * q, 4)} offset:{off + 1024 * q}', 'rwa' if ps == 0 else 'rw')] for q in range(4)]


def phase2(p):
    S = p2_steps()
    N = len(S)
    NH = OPT['nhb']
    nissued = NIS[0]
    bgq = singles(items_of(red_addr))
    polled = False
    AE = 30 + OPT['nb0']
    lim = 16
    LB_ = OPT['tailB']
    hq = []
    for n, st in enumerate(S):
        if n == N - LB_:
            break
        F = []
        inA = OPT['tailA'] and AE - 4 <= n < AE
        if inA:
            i = n - (AE - 4)
            x = 3 - i
            ms = []
            for m in range(AE - 4, AE):
                pre = [('wvm', (('h', m),)), ('wlg', tuple(('w2r', b) for b in w2_operand(S[m])[1]))] if i == 0 else []
                ms.append(pre + [step_mf(S, m, x)])
            if i:
                nop = [Ins('s_nop 3')]
                F = [nop, nop, nop] + red_writes(0, x + 1)
        else:
            ms = [step_mf(S, n, x) for x in range(4)]
            p.wvm(('h', n))
            p.wlg(*[('w2r', b) for b in w2_operand(st)[1]])
        if n % 3 == 0:
            stamp(p, 4)
        for ct in range(2):
            if n == OPT[f'ffl{ct}']:
                F.append([('wvm', (('hf', ct),)), Ins(f'buffer_store_dword {v(VTAG)}, {v(VFF)}, {srd(SH)}, {sFF} offen offset:{64 * ct} sc1', 'ffl')])
        if n >= OPT['w2p2'] and not W2.finished():
            F += W2.tick(100 + n, 0, 0)
        if n == OPT['skipat']:
            assert W2.finished() and not W2.rq and n >= OPT['w2p2'] + 4
            bgq += singles(items_of(skip_loads))
        if n == OPT['skipat'] + OPT['skd']:
            bgq += singles(items_of(skip_calc))
        if n == AE + 1 and not OPT['tailA']:
            assert not bgq
            bgq += singles(items_of(redA_1))
        if n == AE + OPT['redbar'] - 30:
            assert not bgq or not OPT['tailA']
            bgq += singles(items_of(redA_2))
        k = 8 if (n in (AE + 1, AE + 2) and not OPT['tailA']) else (OPT['bgk'] if n < AE else 18)
        if inA:
            assert not bgq or i == 0
        F += bgq[:k]
        bgq = bgq[k:]
        if n == OPT['pfissue'] and n <= OPT['pfcheck']:
            F.append(poll_issue(0))
        if n == OPT['p1issue']:
            F.append(poll_issue(64))
        if OPT['spread']:
            place_v(p, ms, hq, F)
            hq = []
        else:
            place(p, ms, [1] * 4, F)
        if n == 0 or n == 30:
            stamp(p)
        if n == OPT['pfcheck']:
            for g in bgq[:OPT['flush']]:
                p.items.extend(g)
            bgq = bgq[OPT['flush']:]
            if OPT['pfissue'] > n:
                p.items.extend(poll_issue(0))
            stamp(p)
            poll(p, 'pf', 0, True)
            stamp(p)
            lim = 23 + OPT['nb0']
        if n == OPT['p1check']:
            poll(p, 'pg', 64, True)
            lim = N
        cnt = 0
        freed = (AE - 5) if (inA and n < AE - 1) else n
        while nissued < min(lim, freed + NH + 1) and cnt < OPT['hrate']:
            if OPT['spread'] and nissued > n + 2:
                hq += split_v(h_loads(S[nissued], nissued))
            else:
                p.items.extend(h_loads(S[nissued], nissued))
            nissued += 1
            cnt += 1
    assert not bgq and nissued == N and not hq
    if LB_:
        xl = singles(items_of(xch_load))
        for i in range(4):
            x = 3 - i
            ms = []
            for m in range(N - LB_, N):
                pre = [('wvm', (('h', m),))] if i == 0 else []
                ms.append(pre + [step_mf(S, m, x)])
            F = []
            if i:
                nop = [Ins('s_nop 4')]
                F = [nop, nop] + red_writes(1, x + 1)
            if i == OPT['xld'] - 40:
                F += xl
            place(p, ms, [1] * LB_, F)


def final(p):
    acc = BOWN
    if not OPT['tailB']:
        for x in (1, 2, 3):
            for g in red_writes(1, x):
                p.items.extend(g)
    if OPT['xld'] >= 44:
        xch_load(p)
    stamp(p)
    p.wlg('rw')
    p.i('s_barrier')
    stamp(p)
    TT = 128
    for k in range(4):
        for x in range(3):
            p.i(f'ds_read_b128 {v(TT + 16 * x + 4 * k, 4)}, {v(VRR)} offset:{4096 * x + 1024 * k}', ('rr', k))
    for r in range(0, 16, 2):
        p.i(f'v_pk_add_f32 {v(acc + r, 2)}, {v(acc + r, 2)}, {v(XS + r, 2)}')
    for k in range(4):
        p.wlg(('rr', k))
        for e in (0, 2):
            r = 4 * k + e
            p.i(f'v_pk_add_f32 {v(TT + r, 2)}, {v(TT + r, 2)}, {v(TT + 16 + r, 2)}')
            p.i(f'v_pk_add_f32 {v(acc + r, 2)}, {v(acc + r, 2)}, {v(TT + 32 + r, 2)}')
            p.i(f'v_pk_add_f32 {v(acc + r, 2)}, {v(acc + r, 2)}, {v(TT + r, 2)}')
    xch_check(p)
    if OPT['xbf'] == 2:
        p.i('s_mov_b32 s10, 0x0c04000c')
    stamp(p)
    for r in range(0, 16, 2):
        p.i(f's_movk_i32 {sC_}, {2048 * r}')
        xch_add(p, acc, r)
        p.i(f'buffer_store_dword {v(acc + r)}, {v(VO)}, {srd(SOUT)}, {sC_} offen {OPT["of"].replace("+", " ")}')
        p.i(f'buffer_store_dword {v(acc + r + 1)}, {v(VO)}, {srd(SOUT)}, {sC_} offen offset:2048 {OPT["of"].replace("+", " ")}')
    p.i(f'buffer_store_dword {v(VTAG)}, {v(VL0)}, {srd(SH)}, {T("bump")} offen sc1')


def kernel():
    p = Prog()
    prologue(p)
    stamp(p)
    loop1(p)
    loop2(p)
    stamp(p, 2)
    stamp(p, 3)
    transition(p)
    phase2(p)
    stamp(p, 4)
    stamp(p)
    final(p)
    stamp(p)
    if OPT['stamps']:
        p.i('s_waitcnt vmcnt(0)')
        stamp(p)
    stamp_flush(p)
    p.label('L_end')
    p.i('s_endpgm')
    return p


def doalign(txt):
    if not OPT['al']:
        return txt
    from align import align
    return align(txt, OPT['al'], OPT['aln'])


def ntfix(txt):
    if OPT['ex']:
        L = txt.split('\n')
        o2 = []
        k = 0
        for ln in L:
            e = OPT['ex']
            if e & 1 and f', {v(VH2[1])}, {srd(SH)}' in ln:
                ln = ln.replace(f', {v(VH2[1])}, ', f', {v(VL0)}, ')
            if e & 2 and 'lds' in ln and (srd(SW2) in ln or srd(SCRE) in ln or srd(SCIM) in ln):
                ln = ln.split(',')[0].rsplit(' ', 1)[0] + f' {v(VL0)},' + ','.join(ln.split(',')[1:])
            if e & 4 and 'lds' in ln and srd(SW1) in ln:
                ln = ln.split(',')[0].rsplit(' ', 1)[0] + f' {v(VL0)},' + ','.join(ln.split(',')[1:])
            if e & 8 and 'v_mfma_f32_32x32' in ln:
                k += 1
                if k % 2:
                    ln = '  s_nop 0'
            if e & 16 and 'v_mfma_f32_16x16' in ln:
                ln = '  s_nop 0'
            if e & 32 and 'buffer_store_dwordx4' in ln and f', {v(VLG)}, ' in ln and 's54' not in ln:
                ln = ln.replace(f', {v(VLG)}, ', f', {v(VL0)}, ')
            o2.append(ln)
        txt = '\n'.join(o2)
    out = []
    m = {SX: 1, SB: 2, SW1: 4, SW2: 8, SCRE: 8, SCIM: 8}
    for ln in txt.split('\n'):
        if ln.endswith(' lds'):
            for k, bit in m.items():
                if srd(k) in ln and OPT['nt'] & bit:
                    ln = ln[:-4] + ' nt lds'
        out.append(ln)
    return '\n'.join(out)


def main():
    p = kernel()
    print('left', sum(glen(g) for g in LEFT if not isinstance(g, str)))
    out = [f'; @launch grid=(256,1,1) block=(256,1,1) lds={LDS_SIZE}',
           '.amdgcn_target "amdgcn-amd-amdhsa--gfx950"', '.text',
           f'.globl {KN}\n.p2align 8\n.type {KN},@function\n{KN}:',
           doalign(ntfix(p.finalize(verbose=True))),
           '.section .rodata,"a"',
           f'''.p2align 6
.amdhsa_kernel {KN}
  .amdhsa_next_free_vgpr 512
  .amdhsa_next_free_sgpr 102
  .amdhsa_accum_offset 256
  .amdhsa_group_segment_fixed_size 0
  .amdhsa_kernarg_size 120
  .amdhsa_user_sgpr_count 2
  .amdhsa_user_sgpr_kernarg_segment_ptr 1
  .amdhsa_system_sgpr_workgroup_id_x 1
.end_amdhsa_kernel
''']
    tb = (vec_table() if OPT['vt'] else []) + sca_table()
    out.append('.p2align 8\n.type tbl_v,@object\ntbl_v:')
    for k in range(0, len(tb), 16):
        out.append('.long ' + ','.join(str(x) for x in tb[k:k + 16]))
    open(OPT['out'], 'w').write('\n'.join(out) + '\n')


main()
```
